```python
import torch

def _softmax(x, axis=-1):
    return torch.softmax(x, dim=axis)
def _gelu(x):
    return torch.nn.functional.gelu(x, approximate="tanh")
def _silu(x):
    return torch.nn.functional.silu(x)
def _sigmoid(x):
    return torch.sigmoid(x)
def _layernorm(x, axis=-1, eps=1e-5):
    m = x.mean(dim=axis, keepdim=True)
    v = x.var(dim=axis, keepdim=True, unbiased=False)
    return (x - m) / torch.sqrt(v + eps)
def _scatter_add(tgt, idx, src, axis=0):
    return tgt.clone().index_add_(axis, idx, src)
def _segment_sum(src, seg, n):
    out = torch.zeros((n,) + src.shape[1:], dtype=src.dtype)
    return out.index_add_(0, seg, src)
def _pad(x, pw):
    flat = tuple(v for pair in reversed(pw) for v in pair)
    return torch.nn.functional.pad(x, flat)

kernel_name = 'sequential_preLN__linear_attn_block__glu_gated_swiglu__prompt'

def setup_inputs():

    _w = (lambda a: (lambda t: t.to(torch.bfloat16) if t.is_floating_point() else t)(torch.as_tensor(a)))
    def _A_setup():
        B, S, D = 1, 2048, 640
        return {
            "x": _w((lambda *s: torch.randn(*s, dtype=torch.bfloat16) * 0.05)(B, S, D)),
            "wqkv": _w((lambda *s: torch.randn(*s, dtype=torch.bfloat16) * 0.05)(D, 3 * D)),
            "wo": _w((lambda *s: torch.randn(*s, dtype=torch.bfloat16) * 0.05)(D, D)),
        }
    _A_in = _A_setup()

    def _B_setup():
        B, S, D, F = 1, 2048, 640, 1536
        return {
            "x": _w((lambda *s: torch.randn(*s, dtype=torch.bfloat16) * 0.05)(B, S, D)),
            "w1": _w((lambda *s: torch.randn(*s, dtype=torch.bfloat16) * 0.2)(D, F) * (2.0 / D) ** 0.5),
            "w3": _w((lambda *s: torch.randn(*s, dtype=torch.bfloat16) * 0.2)(D, F) * (2.0 / D) ** 0.5),
            "w2": _w((lambda *s: torch.randn(*s, dtype=torch.bfloat16) * 0.2)(F, D) * (2.0 / F) ** 0.5),
        }
    _B_in = _B_setup()

    return {
        "A_x": _A_in["x"],
        "A_wqkv": _A_in["wqkv"],
        "A_wo": _A_in["wo"],
        "B_x": _B_in["x"],
        "B_w1": _B_in["w1"],
        "B_w3": _B_in["w3"],
        "B_w2": _B_in["w2"],
    }

def reference(A_x, A_wqkv, A_wo, B_x, B_w1, B_w3, B_w2):
    def _A_ref(x, wqkv, wo):
        B, S, D = x.shape
        H = 32; Dh = D // H
        qkv = (lambda x, *d: x.permute(*d))((x @ wqkv).reshape(B, S, 3, H, Dh), 2, 0, 3, 1, 4)
        q, k, v = qkv[0], qkv[1], qkv[2]
        phi = lambda t: torch.where(t > 0, t + 1, torch.exp(t)) + 1e-6
        pq, pk = phi(q), phi(k)
        kv = torch.einsum("bhsd,bhse->bhde", pk, v)
        z = torch.einsum("bhsd->bhd", pk)
        num = torch.einsum("bhqd,bhde->bhqe", pq, kv)
        den = torch.einsum("bhqd,bhd->bhq", pq, z)[..., None] + 1e-6
        o = num / den
        return (lambda x, *d: x.permute(*d))(o, 0, 2, 1, 3).reshape(B, S, D) @ wo

    def _B_ref(x, w1, w3, w2):
        gate = torch.einsum("bsd,df->bsf", x, w1)
        up = torch.einsum("bsd,df->bsf", x, w3)
        h = _silu(gate) * up
        out = torch.einsum("bsf,fd->bsd", h, w2)
        return out

    x = A_x
    h = x + _A_ref(_layernorm(x, axis=-1), A_wqkv, A_wo)
    h2 = h + _B_ref(_layernorm(h, axis=-1), B_w1, B_w3, B_w2)
    return h2
```

```python
import re

REG_RE = re.compile(r"^(-|abs\()?([vas])(?:(\d+)|\[(\d+):(\d+)\])\)?$")
TRANS = ("v_exp_f32", "v_log_f32", "v_rcp_f32", "v_rsq_f32", "v_sqrt_f32", "v_sin_f32", "v_cos_f32")


def regs_of(tok):
    tok = tok.strip()
    if tok in ("vcc", "exec", "m0", "scc"):
        return [tok]
    m = REG_RE.match(tok)
    if not m:
        return []
    k = m.group(2)
    if m.group(3) is not None:
        return [f"{k}{int(m.group(3))}"]
    return [f"{k}{i}" for i in range(int(m.group(4)), int(m.group(5)) + 1)]


def R(kind, base, n=1):
    return f"{kind}{base}" if n == 1 else f"{kind}[{base}:{base + n - 1}]"


class Reg:
    def __init__(self, kind, base, n=1):
        self.kind, self.base, self.n = kind, base, n

    def __getitem__(self, i):
        if isinstance(i, slice):
            a = i.start or 0
            b = self.n if i.stop is None else i.stop
            assert 0 <= a < b <= self.n, (a, b, self.n)
            return Reg(self.kind, self.base + a, b - a)
        assert 0 <= i < self.n, (i, self.n)
        return Reg(self.kind, self.base + i, 1)

    def __str__(self):
        return R(self.kind, self.base, self.n)
    __repr__ = __str__
    def __format__(self, spec):
        return str(self)


class Ins:
    __slots__ = ("text", "mn", "rd", "wr", "cls", "tok", "waits", "slots")

    def __init__(self, text, tok=None):
        self.text = text
        self.tok = tok
        self.waits = None
        parts = text.split(None, 1)
        mn = self.mn = parts[0]
        rest = parts[1] if len(parts) > 1 else ""
        ops = []
        for piece in re.split(r",(?![^\[]*\])", rest):
            piece = piece.strip()
            if piece:
                ops.append(piece.split()[0])
        rr = [regs_of(o) for o in ops]
        flat = lambda L: [x for y in L for x in y]
        self.slots = 1
        if mn.endswith(":") or mn.startswith("."):
            self.cls, self.rd, self.wr = "label", [], []
        elif mn.startswith("v_mfma"):
            self.cls, self.wr, self.rd = "mfma", rr[0], flat(rr[1:])
        elif mn.startswith("ds_read"):
            self.cls, self.wr, self.rd = "ds", rr[0], flat(rr[1:])
        elif mn.startswith("ds_write"):
            self.cls, self.wr, self.rd = "ds", [], flat(rr)
        elif mn.startswith("ds_bpermute") or mn.startswith("ds_swizzle"):
            self.cls, self.wr, self.rd = "ds", rr[0], flat(rr[1:])
        elif mn.startswith("buffer_load") or mn.startswith("global_load"):
            if re.search(r"\blds\b", rest):
                self.cls, self.wr, self.rd = "vm", [], flat(rr) + ["m0"]
            else:
                self.cls, self.wr, self.rd = "vm", rr[0], flat(rr[1:])
        elif mn.startswith("buffer_store") or mn.startswith("buffer_atomic") or mn.startswith("global_store"):
            self.cls, self.wr, self.rd = "vm", [], flat(rr)
        elif mn.startswith("v_"):
            self.cls = "valu"
            self.wr, self.rd = rr[0], flat(rr[1:])
            if mn.startswith(("v_fmac", "v_dot2c")) or "_dpp" in mn:
                self.rd = self.rd + rr[0]
            if mn.startswith("v_permlane") and "swap" in mn:
                self.wr = rr[0] + rr[1]
                self.rd = rr[0] + rr[1]
                self.slots = 2
            if mn.startswith(TRANS):
                self.slots = 2
            if mn.startswith(("v_add_co", "v_sub_co", "v_addc_co")):
                self.wr = rr[0] + rr[1]
                self.rd = flat(rr[2:])
        elif mn.startswith(("s_load", "s_memtime", "s_memrealtime")):
            self.cls, self.wr, self.rd = "smem", rr[0], flat(rr[1:])
        elif mn in ("s_waitcnt", "s_nop", "s_barrier", "s_sleep", "s_endpgm", "s_setprio", "WAITVM", "WAITLG"):
            self.cls, self.wr, self.rd = "sctl", [], []
        elif mn.startswith(("s_cbranch", "s_branch")):
            self.cls, self.wr, self.rd = "branch", [], []
        elif mn.startswith("s_cmp"):
            self.cls, self.wr, self.rd = "salu", [], flat(rr)
        elif mn.startswith("s_"):
            self.cls, self.wr, self.rd = "salu", rr[0], flat(rr[1:])
            if "saveexec" in mn:
                self.wr = self.wr + ["exec"]
        else:
            raise ValueError("unknown instruction: " + text)

    @property
    def scalar(self):
        return self.cls in ("salu", "sctl", "smem")


class Tok:
    pass


def waitvm(*inss):
    i = Ins("WAITVM")
    i.waits = [x for x in inss if x is not None]
    return i


def waitlg(*inss):
    i = Ins("WAITLG")
    i.waits = [x for x in inss if x is not None]
    return i


def I(text):
    return Ins(text)


def weave(mf, streams, vslots=2):
    qs = []
    for s in streams:
        q = []
        for e in s:
            q.append(e if isinstance(e, tuple) else (e, 0))
        qs.append(q)
    pos = [0] * len(qs)
    out = []
    for g, m in enumerate(mf):
        out.append(m)
        gap = []
        sfree, vfree = 1, vslots
        progress = True
        while progress:
            progress = False
            for k, q in enumerate(qs):
                while pos[k] < len(q):
                    ins, e = q[pos[k]]
                    if e > g:
                        break
                    if ins.cls in ("label", "branch"):
                        gap.append(ins); pos[k] += 1; sfree = 0; progress = True
                        if ins.cls == "branch":
                            vfree -= 1
                        continue
                    if ins.scalar and sfree and not gap:
                        gap.append(ins); sfree = 0; pos[k] += 1; progress = True
                        continue
                    if ins.slots <= vfree:
                        nxt_scalar = False
                        if not gap and not ins.scalar:
                            for k2, q2 in enumerate(qs):
                                if k2 != k and pos[k2] < len(q2) and q2[pos[k2]][1] <= g and q2[pos[k2]][0].scalar:
                                    gap.append(q2[pos[k2]][0]); pos[k2] += 1; sfree = 0
                                    break
                        gap.append(ins); vfree -= ins.slots; pos[k] += 1; progress = True
                        continue
                    break
        out += gap
    for k, q in enumerate(qs):
        out += [e[0] for e in q[pos[k]:]]
    return out


def spread(inss, g0, g1):
    n = len(inss)
    return [(x, g0 + (g1 - g0) * i // max(n, 1)) for i, x in enumerate(inss)]


class Prog:
    def __init__(self):
        self.ins = []

    def __call__(self, text):
        last = None
        for line in text.strip().split("\n"):
            line = line.strip()
            if line:
                last = Ins(line)
                self.ins.append(last)
        return last

    def add(self, x):
        if isinstance(x, Ins):
            self.ins.append(x)
        else:
            for y in x:
                self.add(y)

    def _insert_waits(self):
        out = []
        vm, lg = [], []
        def need(q, ins, explicit):
            touched = set(ins.rd) | set(ins.wr)
            idx = -1
            for j, p in enumerate(q):
                if (explicit is not None and any(p is e for e in explicit)) or (explicit is None and touched & set(p.wr)):
                    idx = j
            return idx
        def place(kind, q, idx, hoist):
            n = len(q) - 1 - idx
            at = len(out)
            if hoist:
                j = len(out) - 1
                cnt = 0
                steps = 0
                while j >= 0 and steps < 4 and out[j].cls in ("valu", "ds", "vm"):
                    if out[j] is q[idx]:
                        j = -1
                        break
                    if out[j].cls == ("vm" if kind == "vmcnt" else "ds"):
                        cnt += 1
                    j -= 1; steps += 1
                if j >= 0 and out[j].cls == "mfma":
                    at, n = j + 1, n - cnt
                elif j >= 1 and out[j].mn == "s_waitcnt" and out[j - 1].cls == "mfma":
                    at, n = j + 1, n - cnt
            lim = 63 if kind == "vmcnt" else 15
            n = min(n, lim)
            if at > 0 and out[at - 1].mn == "s_waitcnt":
                cur = dict(re.findall(r"(\w+)\((\d+)\)", out[at - 1].text))
                cur[kind] = str(min(int(cur.get(kind, 99)), n))
                out[at - 1] = Ins("s_waitcnt " + " ".join(f"{a}({b})" for a, b in sorted(cur.items(), reverse=True)))
            else:
                out.insert(at, Ins(f"s_waitcnt {kind}({n})"))
            del q[: idx + 1]
        for ins in self.ins:
            if ins.mn == "WAITVM":
                idx = need(vm, ins, ins.waits)
                if idx >= 0:
                    place("vmcnt", vm, idx, False)
                continue
            if ins.mn == "WAITLG":
                idx = need(lg, ins, ins.waits)
                if idx >= 0:
                    place("lgkmcnt", lg, idx, False)
                continue
            if ins.mn == ".RESET":
                vm.clear(); lg.clear()
                continue
            if ins.mn == "s_waitcnt":
                cur = dict(re.findall(r"(\w+)\((\d+)\)", ins.text))
                if "vmcnt" in cur:
                    del vm[: max(0, len(vm) - int(cur["vmcnt"]))]
                if "lgkmcnt" in cur:
                    del lg[: max(0, len(lg) - int(cur["lgkmcnt"]))]
                out.append(ins)
                continue
            hoist = ins.cls == "mfma"
            idx = need(vm, ins, None)
            if idx >= 0:
                place("vmcnt", vm, idx, hoist)
            idx = need(lg, ins, None)
            if idx >= 0:
                place("lgkmcnt", lg, idx, hoist)
            if ins.cls == "vm":
                if len(vm) >= 63:
                    place("vmcnt", vm, len(vm) - 63, False)
                vm.append(ins)
            elif ins.cls == "ds":
                lg.append(ins)
            out.append(ins)
        self.ins = out

    @staticmethod
    def _need_states(p, c):
        n = 0
        pw, cr, cw = set(p.wr), set(c.rd), set(c.wr)
        vec = lambda s: {x for x in s if x[0] in "va" and x != "vcc"}
        sg = lambda s: {x for x in s if x[0] == "s" or x == "vcc"}
        if p.cls == "mfma":
            passes = 8 if "32x32" in p.mn else 4
            big = {4: 8, 8: 12}[passes]
            if c.cls == "mfma":
                ops = [regs_of(o) for o in re.split(r",(?![^\[]*\])", c.text.split(None, 1)[1])]
                if pw & (set(ops[1]) | set(ops[2])):
                    n = max(n, big)
                if pw & set(ops[3]) and set(ops[3]) != pw:
                    n = max(n, {4: 6, 8: 10}[passes])
                if pw & set(ops[0]) and set(ops[3]) != pw:
                    n = max(n, big)
            elif c.cls in ("valu", "ds", "vm"):
                if pw & (cr | cw):
                    n = max(n, big)
                if c.cls == "valu":
                    pc = regs_of(re.split(r",(?![^\[]*\])", p.text.split(None, 1)[1])[3])
                    if set(pc) & cw:
                        n = max(n, {4: 3, 8: 7}[passes])
        if p.cls == "valu":
            pv, ps = vec(pw), sg(pw)
            if c.cls == "mfma" and pv & cr:
                n = max(n, 2)
            if c.cls == "valu":
                if pv & cr:
                    if p.mn.startswith(TRANS):
                        n = max(n, 1)
                    if c.mn.startswith("v_permlane") or "_dpp" in c.mn:
                        n = max(n, 2)
                    if c.mn.startswith(("v_readfirstlane", "v_readlane")):
                        n = max(n, 1)
                    if p.mn.startswith("v_dot2") and not (c.mn == p.mn):
                        n = max(n, 3)
                if ps & cr:
                    n = max(n, 2)
                if "vcc" in ps and c.mn.startswith("v_cndmask") and "vcc" in c.text:
                    n = max(n, 2)
            if c.cls in ("ds", "vm") and pv & cr and p.mn.startswith("v_dot2"):
                n = max(n, 3)
            if c.cls == "vm" and ps & cr:
                n = max(n, 5)
            if c.cls in ("salu", "branch") and ps & (cr | ({"vcc"} if "vcc" in c.mn else set())):
                n = max(n, 1)
        if p.cls == "salu" and "m0" in pw and c.cls == "vm" and "m0" in cr:
            n = max(n, 1)
        if p.cls == "vm" and re.search(r"(store|atomic).*x[34]", p.mn) and c.cls in ("valu", "mfma", "ds", "vm"):
            data = set(regs_of(re.split(r",(?![^\[]*\])", p.text.split(None, 1)[1])[0]))
            if data & cw:
                n = max(n, 2)
        return n

    def _insert_nops(self):
        out = []
        for c in self.ins:
            if c.cls != "label":
                dist, short = 0, 0
                for p in reversed(out):
                    if p.cls == "label":
                        continue
                    if dist >= 12:
                        break
                    short = max(short, self._need_states(p, c) - dist)
                    dist += (int(p.text.split()[1]) + 1) if p.mn == "s_nop" else 1
                if short > 0:
                    out.append(Ins(f"s_nop {short - 1}"))
            out.append(c)
        self.ins = out

    def finish(self):
        self._insert_waits()
        self._insert_nops()
        lines = []
        for i in self.ins:
            lines.append(i.text if i.cls == "label" else "    " + i.text)
        return "\n".join(lines)
```

```python
from asmk import Ins, Reg


class E:
    def __init__(self, op, *a):
        self.op, self.a = op, a
    def __add__(s, o): return E("add", s, w(o))
    def __radd__(s, o): return E("add", s, w(o))
    def __sub__(s, o): return E("sub", s, w(o))
    def __rsub__(s, o): return E("sub", w(o), s)
    def __and__(s, o): return E("and", s, w(o))
    def __or__(s, o): return E("or", s, w(o))
    def __xor__(s, o): return E("xor", s, w(o))
    def __mul__(s, o): return E("mul", s, w(o))
    def __rmul__(s, o): return E("mul", s, w(o))
    def __lshift__(s, o): return E("shl", s, w(o))
    def __rshift__(s, o): return E("shr", s, w(o))
    def lt(s, o): return E("lt", s, w(o))
    def eq(s, o): return E("eq", s, w(o))
    def ge(s, o): return E("ge", s, w(o))


def w(x):
    if isinstance(x, E): return x
    if isinstance(x, int): return E("const", x)
    return E("reg", str(x))


def sel(c, a, b):
    return E("sel", c, w(a), w(b))


def vmin(a, b):
    return E("min", w(a), w(b))


def div(u, d):
    magic = (65536 + d - 1) // d
    for x in range(1024):
        assert (x * magic) >> 16 == x // d
    return (u * magic) >> 16


def compile_expr(dst, e, tmps):
    out = []
    free = [str(tmps[i]) for i in range(tmps.n)]

    def isv(x): return isinstance(x, str) and x[0] == "v"

    def ev(e, want=None):
        if e.op == "const": return e.a[0]
        if e.op == "reg": return e.a[0]
        if e.op == "sel":
            a = tov(ev(e.a[1])); b = tov(ev(e.a[2]))
            c = e.a[0]
            x = ev(c.a[0]); y = tov(ev(c.a[1]))
            out.append(Ins(f"v_cmp_{c.op}_i32 vcc, {fmt(x)}, {y}"))
            rel(x); rel(y); rel(a); rel(b)
            d = want or free.pop()
            out.append(Ins(f"v_cndmask_b32 {d}, {b}, {a}, vcc"))
            return d
        a = ev(e.a[0]); b = ev(e.a[1])
        op = e.op
        if op == "mul" and isinstance(b, int) and b > 0 and b & (b - 1) == 0:
            op, b = "shl", b.bit_length() - 1
        if op in ("add", "or", "xor", "shl", "shr") and b == 0:
            if want:
                out.append(Ins(f"v_mov_b32 {want}, {fmt(a)}")); rel(a); return want
            return a
        if op in ("shl", "shr"):
            a = tov(a); rel(a); rel(b); d = want or free.pop()
            out.append(Ins(f"v_{'lshl' if op == 'shl' else 'lshr'}rev_b32 {d}, {fmt(b)}, {a}"))
            return d
        if op == "sub":
            if isv(b): mn, x, y = "v_sub_u32", a, b
            else:
                a = tov(a); mn, x, y = "v_subrev_u32", b, a
        else:
            mn = {"add": "v_add_u32", "and": "v_and_b32", "or": "v_or_b32", "xor": "v_xor_b32",
                  "mul": "v_mul_u32_u24", "min": "v_min_u32"}[op]
            if isv(b): x, y = a, b
            else:
                a = tov(a); x, y = b, a
        rel(a); rel(b); d = want or free.pop()
        out.append(Ins(f"{mn} {d}, {fmt(x)}, {y}"))
        return d

    names = set(free)
    def rel(x):
        if x in names and x not in free: free.append(x)
    def tov(x):
        if isv(x): return x
        d = free.pop(); out.append(Ins(f"v_mov_b32 {d}, {fmt(x)}")); return d
    def fmt(x):
        return hex(x & 0xFFFFFFFF) if isinstance(x, int) and not -16 <= x <= 64 else str(x)

    r = ev(e, str(dst))
    if r != str(dst):
        out.append(Ins(f"v_mov_b32 {dst}, {fmt(r)}"))
    return out
```

```python
import sys, struct
from asmk import *
from lane import *

NAME = "sequential_preLN__linear_attn_block__glu_gated_swiglu__prompt"

class Cfg:
    stamps = False
    mapA = 256
    mapC = 256
    rot = 0
    spin = 60000
    touchW = 0

STATS = 0x0
KVO   = 0x4000
HST   = 0x12000
ZEND  = 0x16000
FLAGS = 0x20000
FKV, FH, FHH, FPQ = 0x20000, 0x40000, 0x60000, 0x80000
PQ    = 0x100000
HB    = 0x400000
HH    = 0x700000
DIAG  = 0xE00000
WSZ   = 0x1000000
OOB   = 0x40000000

X_, WQ_, WO_, W1_, W3_, W2_, OUT_, DBG_, WS_ = [Reg("s", 8 + 4 * i, 4) for i in range(9)]
sWave, sCl, sMem, sSpin = "s3", "s4", "s5", "s6"
sT = [f"s{i}" for i in range(44, 64)]
V = lambda b, n=1: Reg("v", b, n)
A = lambda b, n=1: Reg("a", b, n)
f32 = lambda x: hex(struct.unpack("<I", struct.pack("<f", x))[0])
LOG2E = 1.4426950408889634

vLane = V(1)
vTmp = V(2, 8)
L = w(vLane)
T16, G4 = L & 15, L >> 4


def mfma(d, a, b, c):
    return I(f"v_mfma_f32_16x16x32_bf16 {d}, {a}, {b}, {c}")


class Gen:
    def __init__(self, cfg):
        self.c = cfg
        self.p = Prog()
        self.slow = []
        self.nlab = 0
        self.nstamp = 0

    def calc(self, dst, e):
        return compile_expr(dst, e, vTmp)

    def stamp(self, i):
        return [I(f"s_memrealtime s[{64 + 2 * i}:{65 + 2 * i}]")] if self.c.stamps else []

    def poll(self, vdst, vaddr, srd, soff, want):
        ld = f"buffer_load_dword {vdst}, {vaddr}, {srd}, {soff} offen sc1"
        self.nlab += 1
        k = self.nlab
        cmp_ = f"v_cmp_gt_u32 vcc, {want}, {vdst}"
        self.slow.append(f"""Lslow{k}:
    s_cmp_eq_u32 {sSpin}, 0
    s_cbranch_scc1 Lback{k}
    s_sub_u32 {sSpin}, {sSpin}, 1
    {ld}
    s_waitcnt vmcnt(0)
    {cmp_}
    s_cbranch_vccnz Lslow{k}
    s_branch Lback{k}""")
        return I(ld), [I(cmp_), I(f"s_cbranch_vccnz Lslow{k}"), I(f"Lback{k}:")]

    def mapping(self, mode, phase):
        p = self.p
        if mode == 256:
            p(f"""s_and_b32 {sCl}, s2, 7
                  s_lshl_b32 {sCl}, {sCl}, 1
                  s_lshr_b32 {sT[0]}, s2, 7
                  s_add_u32 {sCl}, {sCl}, {sT[0]}
                  s_bfe_u32 {sMem}, s2, 0x40003""")
        else:
            p(f"""s_and_b32 {sCl}, s2, 6
                  s_lshl_b32 {sCl}, {sCl}, 1
                  s_lshr_b32 {sT[0]}, s2, 6
                  s_add_u32 {sCl}, {sCl}, {sT[0]}
                  s_and_b32 {sT[0]}, s2, 1
                  s_bfe_u32 {sMem}, s2, 0x30003""")
            if phase == "A":
                p(f"""s_lshl_b32 {sT[1]}, {sT[0]}, 2
                      s_lshl_b32 {sT[2]}, {sT[0]}, 1
                      s_add_u32 {sT[3]}, {sT[2]}, 4
                      s_add_u32 {sT[2]}, {sT[2]}, 6
                      s_cmp_lt_u32 {sMem}, 6
                      s_cselect_b32 {sT[2]}, {sT[3]}, {sT[2]}
                      s_cmp_lt_u32 {sMem}, 4
                      s_cselect_b32 {sT[2]}, {sT[1]}, {sT[2]}
                      s_add_u32 {sMem}, {sMem}, {sT[2]}""")
            else:
                p(f"""s_lshl_b32 {sT[0]}, {sT[0]}, 3
                      s_add_u32 {sMem}, {sMem}, {sT[0]}""")

    def prologue(self):
        p = self.p
        p.add(self.stamp(0))
        p(f"""s_cmp_ge_u32 s2, 256
              s_cbranch_scc1 Lexit
              s_load_dwordx2 {X_[0:2]}, s[0:1], 0
              s_load_dwordx2 {WQ_[0:2]}, s[0:1], 8
              s_load_dwordx16 s[80:95], s[0:1], 16""" if not self.c.stamps else
          f"""s_cmp_ge_u32 s2, 256
              s_cbranch_scc1 Lexit
              s_load_dwordx2 {X_[0:2]}, s[0:1], 0
              s_load_dwordx2 {WQ_[0:2]}, s[0:1], 8
              s_load_dwordx16 s[80:95], s[0:1], 16""")
        for srd, size in ((X_, 2621440), (WQ_, 2457600), (WO_, 819200), (W1_, 1966080), (W3_, 1966080),
                          (W2_, 1966080), (OUT_, 2621440), (DBG_, 256), (WS_, WSZ)):
            p(f"s_mov_b32 {srd[2]}, {size}\ns_mov_b32 {srd[3]}, 0x20000")
        p(f"""v_and_b32 {vLane}, 63, v0
              v_lshrrev_b32 v2, 6, v0
              s_mov_b32 {sSpin}, {self.c.spin}
              v_readfirstlane_b32 {sWave}, v2""")
        self.mapping(self.c.mapA, "A")

    def late_srds(self):
        out = []
        for srd, at in ((WO_, 80), (W1_, 84), (W3_, 86), (W2_, 88), (OUT_, 90), (DBG_, 92), (WS_, 94)):
            out.append(I(f"s_mov_b64 {srd[0:2]}, s[{at}:{at + 1}]"))
        return out

    def gemmA(self, kind):
        p, c = self.p, self.c
        kv = kind == "kv"
        XREG, WREG, WSLOT, PLANE, CSX = 0, 49152, 20512, 10256, 110688
        vDX, vDW, vAX, vAW = V(10, 4), V(14, 5), V(19, 2), V(21, 4)
        ones = V(26, 4)
        FX = [V(30 + 36 * s, 16) for s in range(2)]
        FW = [V(46 + 36 * s, 20) for s in range(2)]
        acc = [[V(102 + 20 * m + 4 * b, 4) for b in range(5)] for m in range(4)]
        cs = [V(182 + 4 * b, 4) for b in range(5)]
        st = V(202, 48)
        vF, vFA = V(250), V(251)
        vSA = V(252)
        vCA = V(253)
        sWm, sWn, sXb, sWb, sK, sX, sW, sMX, sMW, sU = sT[4:14]
        p(".RESET")
        p(f"""s_lshr_b32 {sWm}, {sWave}, 1
              s_and_b32 {sWn}, {sWave}, 1""")
        for n in range(4):
            p.add(self.calc(vDX[n], ((L >> 3) + 8 * n) * 1280 + (((L & 7) ^ (((L >> 4) + 4 * n) & 7)) << 4)))
        for n in range(5):
            u = L + 64 * n
            p.add(self.calc(vFA, div(u, 10)))
            q = w(vFA)
            row = (q & 19) | ((q & 4) << 1) | ((q & 8) >> 1)
            p.add(self.calc(vDW[n], row * 3840 + ((u - q * 10) << 4)))
        p(f"""s_lshl_b32 {sXb}, {sCl}, 7
              s_lshl_b32 {sU}, {sWave}, 5
              s_add_u32 {sXb}, {sXb}, {sU}
              s_mul_i32 {sXb}, {sXb}, 1280
              s_mul_i32 {sWb}, {sWn}, {32 * 3840}""")
        if kv:
            p(f"""s_mul_i32 {sU}, {sMem}, 160
                  s_add_u32 {sWb}, {sWb}, {sU}
                  s_mul_i32 {sU}, {sWm}, 1280
                  s_add_u32 {sWb}, {sWb}, {sU}
                  s_add_u32 {sWb}, {sWb}, 1280""")
        else:
            p(f"""s_sub_u32 {sU}, {sMem}, 8
                  s_mul_i32 {sU}, {sU}, 320
                  s_add_u32 {sWb}, {sWb}, {sU}
                  s_mul_i32 {sU}, {sWm}, 160
                  s_add_u32 {sWb}, {sWb}, {sU}""")
        p(f"""s_lshl_b32 {sMX}, {sWave}, 12
              s_mul_i32 {sMW}, {sWm}, {PLANE}
              s_mul_i32 {sU}, {sWn}, 5120
              s_add_u32 {sMW}, {sMW}, {sU}
              s_add_u32 {sMW}, {sMW}, {WREG}""")
        if c.rot:
            p(f"""s_and_b32 {sK}, s2, 7
                  s_mul_i32 {sK}, {sK}, 5
                  s_lshr_b32 {sK}, {sK}, 2""")
        else:
            p(f"s_mov_b32 {sK}, 0")

        dmas = {}
        def dma(i):
            sl = i % 3
            o = [I(f"s_lshl_b32 {sU}, {sK}, 7"), I(f"s_add_u32 {sX}, {sXb}, {sU}"),
                 I(f"s_mul_i32 {sU}, {sK}, {64 * 3840}"), I(f"s_add_u32 {sW}, {sWb}, {sU}"),
                 I(f"s_add_u32 {sK}, {sK}, 1"), I(f"s_cmp_eq_u32 {sK}, 10"), I(f"s_cselect_b32 {sK}, 0, {sK}")]
            order = [("x", 0), ("w", 0), ("w", 1), ("x", 1), ("w", 2), ("x", 2), ("w", 3), ("x", 3), ("w", 4)]
            for k, n in order:
                if k == "x":
                    o.append(I(f"s_add_u32 m0, {sMX}, {XREG + sl * 16384 + n * 1024}"))
                    o.append(I(f"buffer_load_dwordx4 {vDX[n]}, {X_}, {sX} offen lds"))
                else:
                    o.append(I(f"s_add_u32 m0, {sMW}, {sl * WSLOT + n * 1024}"))
                    o.append(I(f"buffer_load_dwordx4 {vDW[n]}, {WQ_}, {sW} offen lds"))
            dmas[i] = o[-1]
            return o

        p("s_waitcnt lgkmcnt(0)")
        p.add(dma(0))
        p.add(self.late_srds())
        g, r, cq = L >> 4, (L >> 2) & 3, L & 3
        for ss in range(2):
            p(f"s_xor_b32 {sU}, {sWm}, {ss}\ns_lshl_b32 {sT[14]}, {sU}, 2\ns_lshl_b32 {sT[15]}, {sWm}, 13")
            p.add(self.calc(vAX[ss], (T16 << 7) + (((G4 + sT[14]) ^ ((T16 >> 1) & 7)) << 4) + sT[15] + XREG))
            if kv:
                p(f"s_mul_i32 {sT[14]}, {sU}, 5120\ns_mul_i32 {sT[15]}, {sWn}, 80\ns_add_u32 {sT[14]}, {sT[14]}, {sT[15]}")
            else:
                p(f"s_mul_i32 {sT[14]}, {sU}, 5120\ns_mul_i32 {sT[15]}, {sWn}, {PLANE}\ns_add_u32 {sT[14]}, {sT[14]}, {sT[15]}")
            p.add(self.calc(vFA, (((g >> 1) << 4) + ((g & 1) << 2) + r) * 160 + sT[14] + WREG))
            p.add(self.calc(vAW[2 * ss], w(vFA) + (cq << 3)))
            if kv:
                p.add(self.calc(vAW[2 * ss + 1], w(vFA) + 32 + (cq & 1) * 40 + (cq >> 1) * PLANE))
        p.add(dma(1))
        for i in range(4):
            p(f"v_mov_b32 {ones[i]}, 0x3f803f80")
        p.add(self.calc(vFA, L << 2))
        p(f"""s_lshl_b32 {sT[14]}, {sCl}, 9
              s_lshl_b32 {sT[15]}, {sWm}, 8
              s_add_u32 {sT[14]}, {sT[14]}, {sT[15]}""")
        p.add(self.calc(vSA, ((G4 << 4) if kv else (T16 << 2)) + sT[14] + STATS))
        p(f"s_mul_i32 {sT[14]}, {sWave}, 5120")
        p.add(self.calc(vCA, (L << (2 if kv else 4)) + sT[14] + CSX))
        p.add(dma(2))

        def reads(i, ss):
            sl, s = i % 3, ss
            o = []
            def wr(b):
                if kv:
                    a, off = (vAW[2 * ss], (b >> 1) * PLANE + (b & 1) * 40) if b < 4 else (vAW[2 * ss + 1], 0)
                else:
                    a, off = vAW[2 * ss], 32 * b
                return [I(f"ds_read_b64_tr_b16 {FW[s][4 * b + 2 * hf: 4 * b + 2 * hf + 2]}, {a} offset:{sl * WSLOT + off + hf * 1280}")
                        for hf in range(2)]
            xr = lambda m: [I(f"ds_read_b128 {FX[s][4 * m: 4 * m + 4]}, {vAX[ss]} offset:{sl * 16384 + m * 2048}")]
            o += xr(0)
            for b in range(5):
                o += wr(b)
            for m in range(1, 4):
                o += xr(m)
            return o

        def mm(i, ss):
            o = []
            first = i == 0 and ss == 0
            for m in range(4):
                for b in range(5):
                    x, wv = FX[ss][4 * m: 4 * m + 4], FW[ss][4 * b: 4 * b + 4]
                    cc = "0" if first else acc[m][b]
                    o.append(mfma(acc[m][b], x, wv, cc) if kv else mfma(acc[m][b], wv, x, cc))
            if ss == 0 or i == 9:
                for b in range(5):
                    wv = FW[ss][4 * b: 4 * b + 4]
                    cc = "0" if first else cs[b]
                    o.append(mfma(cs[b], ones, wv, cc) if kv else mfma(cs[b], wv, ones, cc))
            return o

        p.add(waitvm(dmas[0]))
        p("s_barrier")
        p.add(self.stamp(1))
        p.add(reads(0, 0))
        f0ld, f0chk = self.poll(vF, vFA, DBG_, 0, 1)
        csp = V(30, 20)
        for i in range(10):
            extra = []
            if i == 7:
                extra = [f0ld]
            p.add(weave(mm(i, 0), [spread(reads(i, 1), 0, 14), [(x, 16) for x in extra]]))
            if i < 9:
                p("s_waitcnt lgkmcnt(0)")
                p.add(waitvm(dmas[i + 1]))
                p("s_barrier")
                side = []
                if i + 3 < 10:
                    side = dma(i + 3)
                if i == 8:
                    side = [(x, 8) for x in ([I(f"ds_write_b32 {vCA}, {cs[b][0]} offset:{256 * b}") for b in range(5)] if kv else
                                             [I(f"ds_write_b128 {vCA}, {cs[b]} offset:{1024 * b}") for b in range(5)])]
                    side += f0chk
                    if kv:
                        for m in range(4):
                            side.append(I(f"buffer_load_dwordx4 {st[4 * m: 4 * m + 4]}, {vSA}, {WS_}, 0 offen offset:{64 * m} sc1"))
                        side.append(I(f"s_mov_b32 {sU}, 8192"))
                        for m in range(4):
                            side.append(I(f"buffer_load_dwordx4 {st[16 + 4 * m: 20 + 4 * m]}, {vSA}, {WS_}, {sU} offen offset:{64 * m} sc1"))
                    else:
                        for m in range(4):
                            side.append(I(f"buffer_load_dword {st[m]}, {vSA}, {WS_}, 0 offen offset:{64 * m} sc1"))
                        side.append(I(f"s_mov_b32 {sU}, 8192"))
                        for m in range(4):
                            side.append(I(f"buffer_load_dword {st[4 + m]}, {vSA}, {WS_}, {sU} offen offset:{64 * m} sc1"))
                p.add(weave(mm(i, 1), [spread(reads(i + 1, 0), 0, 14), side]))
            else:
                p("s_waitcnt lgkmcnt(0)\ns_barrier")
                rd = [I(f"v_xor_b32 {vCA}, 0, {vCA}")]
                p(f"""s_xor_b32 {sU}, {sWave}, 2
                      s_sub_u32 {sU}, {sU}, {sWave}
                      s_mul_i32 {sU}, {sU}, 5120
                      v_add_u32 {vCA}, {sU}, {vCA}""")
                rd = ([I(f"ds_read_b32 {csp[b]}, {vCA} offset:{256 * b}") for b in range(5)] if kv else
                      [I(f"ds_read_b128 {csp[4 * b: 4 * b + 4]}, {vCA} offset:{1024 * b}") for b in range(5)])
                p.add(weave(mm(i, 1), [rd]))
        p.add(self.stamp(2))
        sEps, sOne = Reg("s", 60, 2), Reg("s", 62, 2)
        p(f"s_mov_b32 {sEps[0]}, {f32(1e-6)}\ns_mov_b32 {sEps[1]}, {f32(1e-6)}")
        p(f"s_mov_b32 {sOne[0]}, {f32(LOG2E)}\ns_mov_b32 {sOne[1]}, {f32(LOG2E)}")
        T = V(66, 36)
        if kv:
            self.epiKV(acc, cs, csp, st, T, sEps, sOne, sWm, sWn, sU)
        else:
            self.epiQ(acc, cs, csp, st, T, sEps, sOne, sWm, sWn, sU)

    def phi4(self, a, out2, RS, RSL, T, sEps, bc):
        o = []
        t, s = T[0:4], T[4:8]
        for h in range(2):
            pr = slice(2 * h, 2 * h + 2)
            rs, sl = bc(RS, h), bc(RSL, h)
            o.append(I(f"v_pk_mul_f32 {s[pr]}, {a[pr]}, {sl[0]}{sl[1][0]}"))
            o.append(I(f"v_pk_fma_f32 {t[pr]}, {a[pr]}, {rs[0]}, {sEps}{rs[1][1]}"))
        for i in range(4):
            o.append(I(f"v_exp_f32 {s[i]}, {s[i]} clamp"))
        for i in range(4):
            o.append(I(f"v_max_f32 {t[i]}, {sEps[0]}, {t[i]}"))
        for h in range(2):
            pr = slice(2 * h, 2 * h + 2)
            o.append(I(f"v_pk_add_f32 {t[pr]}, {t[pr]}, {s[pr]}"))
        for h in range(2):
            o.append(I(f"v_cvt_pk_bf16_f32 {out2[h]}, {t[2 * h]}, {t[2 * h + 1]}"))
        return o

    def epiKV(self, acc, cs, csp, st, T, sEps, sLog, sWm, sWn, sU):
        p = self.p
        RS, NM, RSL = st[0:16], st[16:32], st[32:48]
        C = V(50, 6)
        for b in range(5):
            p(f"v_add_f32 {C[b]}, {cs[b][0]}, {csp[b]}")
        for h in range(8):
            p(f"v_pk_mul_f32 {RSL[2 * h: 2 * h + 2]}, {RS[2 * h: 2 * h + 2]}, {sLog}")
        P = [V(182, 8), V(190, 8), V(10, 8), V(18, 8), V(30, 8), V(38, 8)]
        p(f"v_and_b32 {T[30]}, 8, {vLane}\nv_cmp_eq_u32 vcc, 0, {T[30]}\nv_mov_b32 {T[31]}, 0x3f803f80")
        k = 0
        for m in range(4):
            bc = lambda R_, h: (R_[4 * m + 2 * h: 4 * m + 2 * h + 2], ("", ""))
            for b in range(5):
                a = acc[m][b]
                cp = C[b & ~1: (b & ~1) + 2]
                sel_ = f" op_sel:[0,{b & 1},0] op_sel_hi:[1,{b & 1},1]"
                for h in range(2):
                    p(f"v_pk_fma_f32 {a[2 * h: 2 * h + 2]}, {NM[4 * m + 2 * h: 4 * m + 2 * h + 2]}, {cp}, {a[2 * h: 2 * h + 2]}{sel_}")
            for b in (0, 1, 4):
                p.add(self.phi4(acc[m][b], P[b][2 * m: 2 * m + 2], RS, RSL, T[8 * (k % 3): 8 * (k % 3) + 8], sEps, bc)); k += 1
            for b in (2, 3, 4):
                a = acc[m][b]
                d = P[5 if b == 4 else b][2 * m: 2 * m + 2]
                for h in range(2):
                    p(f"v_pk_mul_f32 {a[2 * h: 2 * h + 2]}, {a[2 * h: 2 * h + 2]}, {RS[4 * m + 2 * h: 4 * m + 2 * h + 2]}")
                for h in range(2):
                    p(f"v_cvt_pk_bf16_f32 {d[h]}, {a[2 * h]}, {a[2 * h + 1]}")
                if b == 4:
                    for h in range(2):
                        p(f"v_cndmask_b32 {d[h]}, {d[h]}, {T[31]}, vcc")
        prods = [(0, 2), (1, 3), (0, 5), (1, 5), (4, 2), (4, 3), (4, 5)]
        Dk = [V(102 + 4 * i, 4) for i in range(7)]
        for s in range(2):
            for i, (a, b) in enumerate(prods):
                p.add(mfma(Dk[i], P[a][4 * s: 4 * s + 4], P[b][4 * s: 4 * s + 4], "0" if s == 0 else Dk[i]))
        DUMP = 16384
        vI = V(134, 7)
        p(f"""s_mul_i32 {sU}, {sWm}, 7168
              s_mul_i32 {sT[14]}, {sWn}, 3584
              s_add_u32 {sU}, {sU}, {sT[14]}""")
        dump = (L << 4) + DUMP
        rowB = lambda lo: sel(T16.eq(0), 64, sel(((T16 >> 2)).eq(lo), (T16 & 3) << 4, OOB))
        p.add(self.calc(vI[0], (G4 << 8) + (T16 << 4) + sU))
        p.add(self.calc(vI[2], vmin(G4 * 80 + rowB(2) + 1280 + sU, dump)))
        p.add(self.calc(vI[3], vmin(G4 * 80 + rowB(3) + (1280 + 1792) + sU, dump)))
        p.add(self.calc(vI[4], sel(G4.eq(0), (T16 << 4) + 1024 + sU, dump)))
        p.add(self.calc(vI[5], sel(G4.eq(1), (T16 << 4) + (1024 + 1792) + sU, dump)))
        p.add(self.calc(vI[6], vmin(sel(G4.eq(0), rowB(2), sel(G4.eq(1), rowB(3) + 1792, OOB)) + (1280 + 320) + sU, dump)))
        p(f"ds_write_b128 {vI[0]}, {Dk[0]}\nds_write_b128 {vI[0]}, {Dk[1]} offset:1792")
        for i in range(2, 7):
            p(f"ds_write_b128 {vI[i]}, {Dk[i]}")
        vR, vG, vGl = V(142), V(143), V(144)
        p(f"s_mul_i32 {sU}, {sWave}, 1792")
        p.add(self.calc(vR, (L << 2) + sU))
        p(f"""s_lshl_b32 {sT[14]}, {sMem}, 2
              s_add_u32 {sT[14]}, {sT[14]}, {sWave}
              s_mul_i32 {sT[14]}, {sT[14]}, 1792
              s_add_u32 {sT[14]}, {sT[14]}, {KVO}""")
        p.add(self.calc(vG, L << 2))
        p.add(self.calc(vGl, sel(L.lt(36), L << 2, OOB)))
        p("s_waitcnt lgkmcnt(0)\ns_barrier")
        Y = V(146, 14)
        for i in range(7):
            p(f"ds_read2st64_b32 {Y[2 * i: 2 * i + 2]}, {vR} offset0:{i} offset1:{28 + i}")
        for i in range(7):
            p(f"v_add_f32 {Y[2 * i]}, {Y[2 * i]}, {Y[2 * i + 1]}")
            p(f"buffer_atomic_add_f32 {Y[2 * i]}, {vG if i < 6 else vGl}, {WS_}, {sT[14]} offen offset:{256 * i}")
        p.add(self.stamp(3))
        p(f"""s_lshl_b32 {sU}, {sMem}, 4
              s_add_u32 {sU}, {sU}, {sCl}
              s_lshl_b32 {sU}, {sU}, 7
              s_add_u32 {sU}, {sU}, {FKV}""")
        p(f"s_cmp_eq_u32 {sWave}, 0\ns_cselect_b32 {sT[14]}, 8, 0")
        p.add(self.calc(vG, sel(L.lt(sT[14]), L << 14, OOB)))
        p(f"""v_mov_b32 {vR}, 1
              s_waitcnt vmcnt(0)
              s_barrier
              buffer_store_dword {vR}, {vG}, {WS_}, {sU} offen sc1""")

    def epiQ(self, acc, cs, csp, st, T, sEps, sLog, sWm, sWn, sU):
        p = self.p
        RS, NM, RSL = st[0:4], st[4:8], st[8:12]
        for b in range(5):
            for h in range(2):
                p(f"v_pk_add_f32 {cs[b][2 * h: 2 * h + 2]}, {cs[b][2 * h: 2 * h + 2]}, {csp[4 * b + 2 * h: 4 * b + 2 * h + 2]}")
        for h in range(2):
            p(f"v_pk_mul_f32 {RSL[2 * h: 2 * h + 2]}, {RS[2 * h: 2 * h + 2]}, {sLog}")
        v16, v8 = V(10), V(11)
        p.add(self.calc(v16, L << 4))
        p.add(self.calc(v8, L << 3))
        p(f"""s_lshl_b32 {sU}, {sCl}, 3
              s_lshl_b32 {sT[14]}, {sWm}, 2
              s_add_u32 {sU}, {sU}, {sT[14]}
              s_lshl_b32 {sU}, {sU}, 2
              s_add_u32 {sU}, {sU}, {sMem}
              s_sub_u32 {sU}, {sU}, 8
              s_lshl_b32 {sU}, {sU}, 1
              s_add_u32 {sU}, {sU}, {sWn}
              s_mul_i32 {sU}, {sU}, 2560
              s_add_u32 {sU}, {sU}, {PQ}""")
        k = 0
        for m in range(4):
            O = V(12 + 10 * (m & 1), 10) if False else V(30 + 12 * (m & 1), 10)
            e = m & 1
            bc = lambda R_, h: (R_[m & ~1: (m & ~1) + 2],
                                (f" op_sel:[0,{e}] op_sel_hi:[1,{e}]", f" op_sel:[0,{e},0] op_sel_hi:[1,{e},1]"))
            for b in range(5):
                a = acc[m][b]
                for h in range(2):
                    p(f"v_pk_fma_f32 {a[2 * h: 2 * h + 2]}, {cs[b][2 * h: 2 * h + 2]}, {NM[m & ~1: (m & ~1) + 2]}, {a[2 * h: 2 * h + 2]}"
                      f" op_sel:[0,{e},0] op_sel_hi:[1,{e},1]")
                p.add(self.phi4(a, O[2 * b: 2 * b + 2], RS, RSL, T[8 * (k % 3): 8 * (k % 3) + 8], sEps, bc)); k += 1
            p(f"""buffer_store_dwordx4 {O[0:4]}, {v16}, {WS_}, {sU} offen sc1
                  buffer_store_dwordx4 {O[4:8]}, {v16}, {WS_}, {sU} offen offset:1024 sc1
                  buffer_store_dwordx2 {O[8:10]}, {v8}, {WS_}, {sU} offen offset:2048 sc1
                  s_add_u32 {sU}, {sU}, {8 * 2560}""")
        p.add(self.stamp(3))
        p(f"""s_lshl_b32 {sU}, {sCl}, 2
              s_add_u32 {sU}, {sU}, {sMem}
              s_sub_u32 {sU}, {sU}, 8
              s_lshl_b32 {sU}, {sU}, 2
              s_add_u32 {sU}, {sU}, {sWave}
              s_lshl_b32 {sU}, {sU}, 7
              s_add_u32 {sU}, {sU}, {FPQ}""")
        p.add(self.calc(v16, sel(L.eq(0), 0, OOB)))
        p(f"""v_mov_b32 {v8}, 1
              s_waitcnt vmcnt(0)
              buffer_store_dword {v8}, {v16}, {WS_}, {sU} offen sc1
              s_barrier""")

    def helper(self):
        p = self.p
        p(".RESET")
        sH, sU = sT[4], sT[5]
        vA, vB, vZ = V(10), V(11), V(12, 4)
        Xr = V(16, 40)
        p(f"""s_lshl_b32 {sH}, {sCl}, 2
              s_add_u32 {sH}, {sH}, {sMem}
              s_sub_u32 {sH}, {sH}, 12""")
        p.add(self.calc(vA, (L >> 3) * 1280 + ((L & 7) << 4)))
        p(f"""s_lshl_b32 {sU}, {sH}, 2
              s_add_u32 {sU}, {sU}, {sWave}
              s_mul_i32 {sT[6]}, {sU}, {8 * 1280}
              s_waitcnt lgkmcnt(0)""")
        for i in range(10):
            p(f"buffer_load_dwordx4 {Xr[4 * i: 4 * i + 4]}, {vA}, {X_}, {sT[6]} offen offset:{128 * i}")
        p.add(self.late_srds())
        p(f"""s_getpc_b64 s[60:61]
              Lpc:
              s_sub_u32 s60, s60, Lpc-{NAME}_kernel
              s_subb_u32 s61, s61, 0
              s_and_b32 {sT[7]}, {sU}, 31
              s_lshl_b32 {sT[7]}, {sT[7]}, 11""")
        p.add(self.calc(vB, ((L & 15) << 7) + sT[7]))
        p(f"v_min_u32 {vB}, Lcodeend-{NAME}_kernel-4, {vB}")
        p(f"global_load_dword {V(56)}, {vB}, s[60:61]")
        for i in range(4):
            p(f"v_mov_b32 {vZ[i]}, 0")
        per = (ZEND - KVO) // 256
        assert per % 16 == 0
        p.add(self.calc(vB, sel(L.lt(per // 16), L << 4, OOB)))
        p(f"""s_mul_i32 {sT[7]}, {sU}, {per}
              s_add_u32 {sT[7]}, {sT[7]}, {KVO}
              buffer_store_dwordx4 {vZ}, {vB}, {WS_}, {sT[7]} offen sc1""")
        p.add(self.calc(vB, sel(L.lt(16), L << 7, OOB)))
        p(f"""s_lshl_b32 {sT[7]}, {sU}, 11
              s_add_u32 {sT[7]}, {sT[7]}, {FLAGS}
              buffer_store_dword {vZ[0]}, {vB}, {WS_}, {sT[7]} offen sc1""")
        s1, s2, t = V(60), V(61), V(62)
        p(f"v_mov_b32 {s1}, 0\nv_mov_b32 {s2}, 0\nv_mov_b32 {t}, 0x3f803f80")
        for i in range(40):
            p(f"v_dot2_f32_bf16 {s1}, {Xr[i]}, {t}, {s1}")
            p(f"v_dot2_f32_bf16 {s2}, {Xr[i]}, {Xr[i]}, {s2}")
        for mod in ("quad_perm:[1,0,3,2]", "quad_perm:[2,3,0,1]", "row_half_mirror"):
            p(f"v_add_f32_dpp {s1}, {s1}, {s1} {mod} row_mask:0xf bank_mask:0xf")
            p(f"v_add_f32_dpp {s2}, {s2}, {s2} {mod} row_mask:0xf bank_mask:0xf")
        p(f"""v_mul_f32 {s1}, {f32(-1.0 / 640)}, {s1}
              v_mul_f32 {s2}, {f32(1.0 / 640)}, {s2}
              v_fma_f32 {s2}, -{s1}, {s1}, {s2}
              v_max_f32 {s2}, 0, {s2}
              v_add_f32 {s2}, {f32(1e-5)}, {s2}
              v_rsq_f32 {s2}, {s2}""")
        p.add(self.calc(vB, sel((L & 7).lt(2), ((L & 7) << 13) + ((L >> 3) << 2), OOB)))
        p(f"""v_and_b32 {t}, 7, {vLane}
              v_cmp_eq_u32 vcc, 0, {t}
              v_cndmask_b32 {s1}, {s1}, {s2}, vcc
              s_lshl_b32 {sT[7]}, {sU}, 5
              buffer_store_dword {s1}, {vB}, {WS_}, {sT[7]} offen sc1""")
        p(f"s_cmp_eq_u32 {sWave}, 0\ns_cselect_b32 {sT[7]}, 1, 0")
        p.add(self.calc(vB, sel(L.lt(sT[7]), 0, OOB)))
        p(f"""v_mov_b32 {t}, 1
              s_lshl_b32 {sT[7]}, {sH}, 2
              s_waitcnt vmcnt(0)
              s_barrier
              buffer_store_dword {t}, {vB}, {DBG_}, {sT[7]} offen sc1""")
        p.add(self.stamp(1))
        p.add(self.calc(vA, L << 2))
        ld, chk = self.poll(vB, vA, DBG_, 0, 1)
        p("s_sleep 32")
        p.add(ld); p.add(chk)
        p.add(self.stamp(2)); p.add(self.stamp(3))

    def stage_wo(self, sCg):
        p = self.p
        vD, vR0, vR1 = V(10), V(11), V(12)
        sS, sM = sT[8], sT[9]
        p.add(self.calc(vD, (L >> 4) * 1280 + (((L & 15) ^ ((L >> 4) << 2)) << 4)))
        g, r, cq = L >> 4, (L >> 2) & 3, L & 3
        p(f"s_lshl_b32 {sM}, {sWave}, 2")
        p.add(self.calc(vR0, (((g << 2) + r) << 8) + (((cq + sM) ^ (r << 2)) << 4)))
        p.add(self.calc(vR1, ((r * 20 + 16 + g) << 8) + (((cq + sM) ^ (g << 2)) << 4)))
        p(f"""s_lshl_b32 {sS}, {sCg}, 8
              s_mul_i32 {sM}, {sWave}, {40 * 1280}
              s_add_u32 {sS}, {sS}, {sM}
              s_mul_i32 {sM}, {sWave}, 10240""")
        last = {}
        def dma(cn):
            for n in range(10):
                p(f"s_add_u32 m0, {sM}, {(cn % 3) * 40960 + n * 1024}")
                last[cn] = p(f"buffer_load_dwordx4 {vD}, {WO_}, {sS} offen lds")
                p(f"s_add_u32 {sS}, {sS}, {4 * 1280 if n < 9 else (160 - 36) * 1280}")
        for cn in range(3):
            dma(cn)
        for cn in range(4):
            p.add(waitvm(last[cn]))
            p("s_waitcnt lgkmcnt(0)\ns_barrier")
            if cn == 1:
                dma(3)
            for f in range(5):
                for u in range(2):
                    d = A(((cn * 5 + f) * 2 + u) * 4, 4)
                    for hf in range(2):
                        if f < 4:
                            p(f"ds_read_b64_tr_b16 {d[2 * hf: 2 * hf + 2]}, {vR0} offset:{(2 * f + hf) * 20 * 256 + 8 * u}")
                        else:
                            p(f"ds_read_b64_tr_b16 {d[2 * hf: 2 * hf + 2]}, {vR1} offset:{hf * 80 * 256 + 8 * u}")
            step = 40960 if cn < 2 else -81920
            if cn < 3:
                p(f"v_add_u32 {vR0}, {step & 0xffffffff:#x}, {vR0}\nv_add_u32 {vR1}, {step & 0xffffffff:#x}, {vR1}")
        p("s_waitcnt lgkmcnt(0)\ns_barrier")

    def stage_w13(self, W13):
        p = self.p
        vD, vR0, vR1 = V(10, 3), V(13), V(14)
        sS, sM = sT[8], sT[9]
        PL, CH = 12304, 24608
        SR = Reg("s", 60, 4)
        for n in range(3):
            u = L + 64 * n
            p.add(self.calc(vR0, div(u, 12)))
            q = w(vR0)
            p.add(self.calc(vD[n], q * 3072 + ((u - q * 12) << 4)))
        g, r, cq = L >> 4, (L >> 2) & 3, L & 3
        p(f"s_mul_i32 {sM}, {sWave}, 48")
        p.add(self.calc(vR1, ((g << 3) + r) * 192 + sM))
        p.add(self.calc(vR0, w(vR1) + (cq << 3)))
        p.add(self.calc(vR1, w(vR1) + 32 + ((cq & 1) << 3) + (cq >> 1) * PL))
        p(f"""s_cmp_lt_u32 {sWave}, 2
              s_cselect_b64 {SR[0:2]}, {W1_[0:2]}, {W3_[0:2]}
              s_mov_b32 {SR[2]}, 1966080
              s_mov_b32 {SR[3]}, 0x20000
              s_and_b32 {sM}, {sWave}, 1
              s_mul_i32 {sS}, {sM}, {32 * 3072}
              s_mul_i32 {sT[10]}, {sMem}, 192
              s_add_u32 {sS}, {sS}, {sT[10]}
              s_mul_i32 {sM}, {sM}, 6144
              s_lshr_b32 {sT[10]}, {sWave}, 1
              s_mul_i32 {sT[10]}, {sT[10]}, {PL}
              s_add_u32 {sM}, {sM}, {sT[10]}""")
        last = {}
        NS = 4
        def dma(cn):
            for n in range(6):
                p(f"s_add_u32 m0, {sM}, {(cn % NS) * CH + n * 1024}")
                last[cn] = p(f"buffer_load_dwordx4 {vD[n % 3]}, {SR}, {sS} offen lds")
                if n % 3 == 2:
                    p(f"s_add_u32 {sS}, {sS}, {16 * 3072 if n == 2 else 48 * 3072}")
        for cn in range(NS - 1):
            dma(cn)
        for cn in range(10):
            p.add(waitvm(last[cn]))
            p("s_waitcnt lgkmcnt(0)\ns_barrier")
            if cn + NS - 1 < 10:
                dma(cn + NS - 1)
            for s in range(2):
                for T in range(3):
                    d = W13[2 * cn + s][T]
                    for hf in range(2):
                        off = (32 * s + 4 * hf) * 192 + (PL if T == 1 else 0)
                        p(f"ds_read_b64_tr_b16 {d[2 * hf: 2 * hf + 2]}, {vR1 if T == 2 else vR0} offset:{off}")
            step = CH if cn % NS < NS - 1 else -(NS - 1) * CH
            p(f"v_add_u32 {vR0}, {step & 0xffffffff:#x}, {vR0}\nv_add_u32 {vR1}, {step & 0xffffffff:#x}, {vR1}")
        p("s_waitcnt lgkmcnt(0)\ns_barrier")

    def stage_w2(self, W2, sCt):
        p = self.p
        vD, vR = V(10, 5), V(15)
        sS, sM = sT[8], sT[9]
        NS = 6
        for n in range(5):
            u = L + 64 * n
            p.add(self.calc(vR, div(u, 10)))
            q = w(vR)
            row = (q & 19) | ((q & 4) << 1) | ((q & 8) >> 1)
            p.add(self.calc(vD[n], row * 1280 + ((u - q * 10) << 4)))
        g, r, cq = L >> 4, (L >> 2) & 3, L & 3
        p(f"""s_mul_i32 {sM}, {sWave}, {NS * 5120}
              s_mul_i32 {sS}, {sWave}, {384 * 1280}
              s_mul_i32 {sT[10]}, {sCt}, 160
              s_add_u32 {sS}, {sS}, {sT[10]}""")
        p.add(self.calc(vR, (((g >> 1) << 4) + ((g & 1) << 2) + r) * 160 + (cq << 3) + sM))
        last, rds = {}, {}
        def dma(cn):
            for n in range(5):
                p(f"s_add_u32 m0, {sM}, {(cn % NS) * 5120 + n * 1024}")
                last[cn] = p(f"buffer_load_dwordx4 {vD[n]}, {W2_}, {sS} offen lds")
            p(f"s_add_u32 {sS}, {sS}, {32 * 1280}")
        for cn in range(NS):
            dma(cn)
        for cn in range(12):
            p.add(waitvm(last[cn]))
            for ct in range(5):
                for hf in range(2):
                    rds[cn] = p(f"ds_read_b64_tr_b16 {W2[cn][ct][2 * hf: 2 * hf + 2]}, {vR} offset:{(cn % NS) * 5120 + hf * 1280 + 32 * ct}")
            if cn >= 1 and cn - 1 + NS < 12:
                p.add(waitlg(rds[cn - 1]))
                dma(cn - 1 + NS)
        p("s_waitcnt lgkmcnt(0)\ns_barrier")

    def phaseB(self):
        p = self.p
        sCg, sTg, sNt, sU, sTile = sT[4], sT[5], sT[6], sT[7], sT[11]
        self.mapping(256, "B")
        p(f"""s_cmp_eq_u32 {sMem}, 15
              s_cbranch_scc1 LendB
              s_mul_i32 {sTg}, {sMem}, 52
              s_lshr_b32 {sTg}, {sTg}, 8
              s_mul_i32 {sU}, {sTg}, 5
              s_sub_u32 {sCg}, {sMem}, {sU}""")
        self.stage_wo(sCg)
        p.add(self.stamp(4))
        v16, v8, vF, vFA, vXA, vOW, vSA = V(10), V(11), V(12), V(13), V(14), V(15), V(16)
        vKA = V(18, 16)
        EPS = V(34, 4)
        XR = V(38, 12)
        PQr = [A(160 + 20 * i, 20) for i in range(3)]
        RAW = V(128, 128)
        p.add(self.calc(v16, L << 4))
        p.add(self.calc(v8, L << 3))
        p.add(self.calc(vFA, (L & 3) << 7))
        p(f"""s_lshl_b32 {sU}, {sCl}, 2
              s_add_u32 {sU}, {sU}, {sWave}
              s_lshl_b32 {sU}, {sU}, 9
              s_add_u32 {sT[12]}, {sU}, {FPQ}""")
        ld, chk = self.poll(vF, vFA, WS_, sT[12], 1)
        p.add(ld)
        p(f"""s_lshl_b32 {sTile}, {sCl}, 3
              s_add_u32 {sTile}, {sTile}, {sTg}
              s_lshl_b32 {sU}, {sCg}, 8
              s_lshl_b32 {sT[13]}, {sWave}, 6
              s_add_u32 {sU}, {sU}, {sT[13]}""")
        p.add(self.calc(vXA, T16 * 1280 + (G4 << 4) + sU))
        p(f"s_mul_i32 {sU}, {sTile}, {16 * 1280}")
        for i in range(3):
            p(f"buffer_load_dwordx4 {XR[4 * i: 4 * i + 4]}, {vXA}, {X_}, {sU} offen")
            p(f"s_add_u32 {sU}, {sU}, {48 * 1280}")
        for jj in range(4):
            for q in range(2):
                ok = G4.ge(jj) if q == 0 else G4.lt(jj + 1)
                dq = G4 + (4 * q - jj)
                p.add(self.calc(vKA[2 * jj + q], sel(ok, (dq << 8) + (T16 << 4) + jj * 1792, OOB)))
                r0 = 2 * (jj & 1)
                rowB = sel((T16 & 3).eq(r0), (T16 >> 2) << 4, sel((T16 & 3).eq(r0 + 1), 64, OOB))
                p.add(self.calc(vKA[8 + 2 * jj + q], sel(ok, (dq & 7) * 80 + rowB + (jj * 1792 + 1280), OOB)))
        p(f"v_mov_b32 {EPS[0]}, 0\nv_mov_b32 {EPS[1]}, {f32(1e-6)}\nv_mov_b32 {EPS[2]}, 0\nv_mov_b32 {EPS[3]}, {f32(1e-6)}")
        p(f"s_mul_i32 {sU}, {sWave}, 5120")
        p.add(self.calc(vOW, (L << 4) + sU))
        p.add(self.calc(vSA, (T16 << 3) + ((L >> 5) << 2)))
        p.add(chk)
        p(f"""s_lshl_b32 {sU}, {sTile}, 2
              s_add_u32 {sU}, {sU}, {sWave}
              s_mul_i32 {sU}, {sU}, 5120
              s_add_u32 {sU}, {sU}, {PQ}""")
        for i in range(3):
            if i == 2:
                p(f"s_cmp_eq_u32 {sTg}, 2\ns_cselect_b32 {sU}, {OOB}, {sU}")
            for hn in range(2):
                o = 2560 * hn
                p(f"""buffer_load_dwordx4 {PQr[i][10 * hn: 10 * hn + 4]}, {v16}, {WS_}, {sU} offen sc1
                      buffer_load_dwordx4 {PQr[i][10 * hn + 4: 10 * hn + 8]}, {v16}, {WS_}, {sU} offen offset:1024 sc1
                      buffer_load_dwordx2 {PQr[i][10 * hn + 8: 10 * hn + 10]}, {v8}, {WS_}, {sU} offen offset:2048 sc1
                      s_add_u32 {sU}, {sU}, {2560 if hn == 0 else 3 * 8 * 2560 - 2560}""")
        p.add(self.calc(vFA, (L & 31) << 7))
        p(f"""s_and_b32 {sU}, s2, 7
              s_lshl_b32 {sU}, {sU}, 14
              s_lshl_b32 {sT[12]}, {sWave}, 12
              s_add_u32 {sT[12]}, {sT[12]}, {sU}
              s_add_u32 {sT[12]}, {sT[12]}, {FKV}""")
        ld, chk = self.poll(vF, vFA, WS_, sT[12], 1)
        p.add(self.stamp(5))
        p.add(ld); p.add(chk)
        p.add(self.stamp(6))
        p(f"""s_mul_i32 {sU}, {sWave}, {8 * 1792}
              s_add_u32 {sU}, {sU}, {KVO}""")
        for hh in range(8):
            jj = hh & 3
            if hh == 4:
                p(f"s_add_u32 {sU}, {sU}, {4 * 1792}")
            for k in range(4):
                ad = vKA[8 * (k >> 1) + 2 * jj + (k & 1)]
                p(f"buffer_load_dwordx4 {RAW[16 * hh + 4 * k: 16 * hh + 4 * k + 4]}, {ad}, {WS_}, {sU} offen sc1")
        FA = [RAW[16 * hh: 16 * hh + 4] for hh in range(8)]
        FB = [RAW[16 * hh + 4: 16 * hh + 8] for hh in range(8)]
        for hh in range(8):
            for j in range(8):
                p(f"v_cvt_pk_bf16_f32 {RAW[16 * hh + j]}, {RAW[16 * hh + 2 * j]}, {RAW[16 * hh + 2 * j + 1]}")
        p.add(self.stamp(7))
        sHO, sSO, sFO = sT[12], sT[13], sT[14]
        p(f"""s_mul_i32 {sHO}, {sTile}, 20
              s_lshl_b32 {sU}, {sCg}, 2
              s_add_u32 {sHO}, {sHO}, {sU}
              s_add_u32 {sHO}, {sHO}, {sWave}
              s_lshl_b32 {sHO}, {sHO}, 10
              s_add_u32 {sHO}, {sHO}, {HB}
              s_lshl_b32 {sSO}, {sTile}, 7
              s_add_u32 {sSO}, {sSO}, {HST}
              s_lshl_b32 {sFO}, {sCl}, 4
              s_add_u32 {sFO}, {sFO}, {sMem}
              s_lshl_b32 {sFO}, {sFO}, 2
              s_add_u32 {sFO}, {sFO}, {sWave}
              s_lshl_b32 {sFO}, {sFO}, 7
              s_add_u32 {sFO}, {sFO}, {FH}""")
        p.add(self.calc(vFA, sel(L.eq(0), 0, OOB)))
        Dn = V(50, 48)
        OF = V(98, 20)
        acc = V(118, 8)
        OR_ = [RAW[16 * (j >> 1) + 8 + 4 * (j & 1): 16 * (j >> 1) + 12 + 4 * (j & 1)] for j in range(16)]
        for i in range(3):
            if i == 2:
                p(f"s_cmp_eq_u32 {sTg}, 2\ns_cbranch_scc1 LendB0")
            ob = (i & 1) * 20480
            win = lambda hh: PQr[i][10 * (hh >> 2) + 2 * (hh & 3): 10 * (hh >> 2) + 2 * (hh & 3) + 4]
            for a in range(4):
                d = Dn[12 * a: 12 * a + 12]
                p.add(mfma(d[8:12], FB[2 * a], win(2 * a), EPS))
                p.add(mfma(d[8:12], FB[2 * a + 1], win(2 * a + 1), d[8:12]))
                p.add(mfma(d[0:4], FA[2 * a], win(2 * a), "0"))
                p.add(mfma(d[4:8], FA[2 * a + 1], win(2 * a + 1), "0"))
            for j in range(4):
                p(f"v_lshlrev_b32 {acc[(j >> 1) * 4 + (j & 1) * 2]}, 16, {XR[4 * i + j]}")
                p(f"v_and_b32 {acc[(j >> 1) * 4 + (j & 1) * 2 + 1]}, 0xffff0000, {XR[4 * i + j]}")
            for a in range(4):
                d = Dn[12 * a: 12 * a + 12]
                p(f"v_rcp_f32 {d[9]}, {d[9]}\nv_rcp_f32 {d[11]}, {d[11]}")
                for e in range(2):
                    for j in range(4):
                        p(f"v_mul_f32 {d[4 * e + j]}, {d[9 + 2 * e]}, {d[4 * e + j]}")
                    p(f"v_mul_f32 {d[8 + 2 * e]}, {d[9 + 2 * e]}, {d[8 + 2 * e]}")
                for j in range(4):
                    p(f"v_cvt_pk_bf16_f32 {OF[4 * a + j]}, {d[2 * j]}, {d[2 * j + 1]}")
                p(f"v_cvt_pk_bf16_f32 {OF[16 + a]}, {d[8]}, {d[10]}")
                p(f"ds_write_b128 {vOW}, {OF[4 * a: 4 * a + 4]} offset:{ob + 1024 * a}")
            p(f"ds_write_b128 {vOW}, {OF[16:20]} offset:{ob + 4096}")
            p("s_waitcnt lgkmcnt(0)\ns_barrier")
            rd = [I(f"ds_read_b128 {OR_[ks % 16]}, {v16} offset:{ob + 1024 * ks}") for ks in range(20)]
            p.add(rd[:6])
            mf = []
            for ks in range(20):
                for u in range(2):
                    mf.append(mfma(acc[4 * u: 4 * u + 4], A((ks * 2 + u) * 4, 4), OR_[ks % 16], acc[4 * u: 4 * u + 4]))
            p.add(weave(mf, [[(x, 2 * k) for k, x in enumerate(rd[6:])]]))
            H = OF[0:4]
            for j in range(4):
                p(f"v_cvt_pk_bf16_f32 {H[j]}, {acc[2 * j]}, {acc[2 * j + 1]}")
            p(f"buffer_store_dwordx4 {H}, {v16}, {WS_}, {sHO} offen sc1")
            s1, s2 = Dn[0], Dn[1]
            p(f"v_add_f32 {s1}, {acc[0]}, {acc[1]}\nv_mul_f32 {s2}, {acc[0]}, {acc[0]}\nv_fmac_f32 {s2}, {acc[1]}, {acc[1]}")
            for j in range(2, 8):
                p(f"v_add_f32 {s1}, {s1}, {acc[j]}\nv_fmac_f32 {s2}, {acc[j]}, {acc[j]}")
            p(f"""v_permlane32_swap_b32 {s1}, {s2}
                  v_add_f32 {s1}, {s1}, {s2}
                  v_mov_b32 {s2}, {s1}
                  v_permlane16_swap_b32 {s1}, {s2}
                  v_add_f32 {s1}, {s1}, {s2}
                  s_mov_b32 exec_lo, 0xffff
                  s_mov_b32 exec_hi, 0xffff
                  buffer_atomic_add_f32 {s1}, {vSA}, {WS_}, {sSO} offen
                  s_mov_b64 exec, -1
                  v_mov_b32 {vF}, {i + 1}
                  s_add_u32 {sHO}, {sHO}, {3 * 20480}
                  s_add_u32 {sSO}, {sSO}, {3 * 128}
                  s_waitcnt vmcnt(0)
                  buffer_store_dword {vF}, {vFA}, {WS_}, {sFO} offen sc1""")
            if i == 0:
                p.add(self.stamp(8))
        p("LendB0:\ns_barrier\nLendB:")
        p("s_waitcnt vmcnt(0) lgkmcnt(0)")

    def phaseC(self):
        p = self.p
        self.mapping(self.c.mapC, "C")
        W13 = [[A((ks * 3 + T) * 4, 4) for T in range(3)] for ks in range(20)]
        self.stage_w13(W13)
        p.add(self.stamp(9))
        v16, vF, vFA, vSA, vEW, vEW2, vER, vGA, vOne, vFO = [V(10 + i) for i in range(10)]
        ones = V(20, 4)
        CS = V(24, 12)
        acc = [V(36, 12), V(48, 12)]
        HF = [V(60 + 4 * i, 4) for i in range(8)]
        ST = [V(92, 2), V(94, 2)]
        mean, ve, ke = V(96), V(97), V(98)
        Tm = V(100, 12)
        HO = V(112, 4)
        EX = V(116, 4)
        HR, EXB = 0, 61440
        sU, sHS, sMH, sFS, sSS, sGO, sFO = sT[4:11]
        for i in range(4):
            p(f"v_mov_b32 {ones[i]}, 0x3f803f80")
        for ks in range(20):
            for T in range(3):
                p.add(mfma(CS[4 * T: 4 * T + 4], W13[ks][T], ones, "0" if ks == 0 else CS[4 * T: 4 * T + 4]))
        p.add(self.calc(v16, L << 4))
        p.add(self.calc(vFA, vmin(L, 19) << 7))
        p.add(self.calc(vSA, T16 << 3))
        p(f"s_mul_i32 {sU}, {sWave}, 48")
        p.add(self.calc(vEW2, T16 * 208 + sU + EXB))
        p.add(self.calc(vEW, w(vEW2) + (G4 << 3)))
        p.add(self.calc(vEW2, w(vEW2) + 32 + ((G4 & 1) << 3) + ((G4 >> 1) << 2)))
        p(f"s_min_u32 {sU}, {sWave}, 2\ns_lshl_b32 {sU}, {sU}, 6")
        p.add(self.calc(vER, T16 * 208 + (G4 << 4) + sU + EXB))
        p(f"s_cmp_lt_u32 {sWave}, 3\ns_cselect_b32 {sU}, 0, {OOB}")
        p.add(self.calc(vGA, (L << 4) + sU))
        p.add(self.calc(vFO, sel(L.eq(0), 0, OOB)))
        p(f"""s_mul_i32 {sHS}, {sCl}, {8 * 20480}
              s_mul_i32 {sMH}, {sWave}, 5120
              s_add_u32 {sHS}, {sHS}, {sMH}
              s_add_u32 {sHS}, {sHS}, {HB}
              s_lshl_b32 {sFS}, {sCl}, 13
              s_add_u32 {sFS}, {sFS}, {FH}
              s_lshl_b32 {sSS}, {sCl}, 10
              s_add_u32 {sSS}, {sSS}, {HST}
              s_mul_i32 {sGO}, {sCl}, {8 * 48}
              s_mul_i32 {sU}, {sMem}, 3
              s_add_u32 {sGO}, {sGO}, {sU}
              s_add_u32 {sGO}, {sGO}, {sWave}
              s_lshl_b32 {sGO}, {sGO}, 10
              s_add_u32 {sGO}, {sGO}, {HH}
              s_lshl_b32 {sFO}, {sCl}, 4
              s_add_u32 {sFO}, {sFO}, {sMem}
              s_lshl_b32 {sFO}, {sFO}, 2
              s_add_u32 {sFO}, {sFO}, {sWave}
              s_lshl_b32 {sFO}, {sFO}, 7
              s_add_u32 {sFO}, {sFO}, {FHH}""")
        p(f"v_permlane32_swap_b32 {CS[8]}, {CS[10]}\nv_permlane32_swap_b32 {CS[9]}, {CS[11]}")
        sP = [sT[11], sT[12], sT[13]]
        for tg in range(3):
            p(f"s_add_u32 {sP[tg]}, {sFS}, {tg * 20 * 128}")
        polls = {i: self.poll(vF, vFA, WS_, sP[i % 3], i // 3 + 1) for i in range(8)}
        last = {}
        def dma(i):
            o = []
            for n in range(5):
                o.append(I(f"s_add_u32 m0, {sMH}, {HR + (i % 3) * 20480 + n * 1024}"))
                o.append(I(f"buffer_load_dwordx4 {v16}, {WS_}, {sHS} offen sc1 lds"))
                o.append(I(f"s_add_u32 {sHS}, {sHS}, {1024 if n < 4 else 20480 - 4096}"))
            last[i] = o[-2]
            return o
        stld = lambda i: I(f"buffer_load_dwordx2 {ST[i & 1]}, {vSA}, {WS_}, {sSS} offen offset:{128 * i} sc1")
        rd = lambda i, ks: I(f"ds_read_b128 {HF[(20 * i + ks) % 8]}, {v16} offset:{HR + (i % 3) * 20480 + 1024 * ks}")
        def epi(i):
            a, s = acc[i & 1], ST[i & 1]
            o = [I(f"v_mul_f32 {mean}, {f32(-1.0 / 640)}, {s[0]}"),
                 I(f"v_mov_b32 {ve}, {f32(1e-5)}"),
                 I(f"v_fmac_f32 {ve}, {f32(1.0 / 640)}, {s[1]}"),
                 I(f"v_fma_f32 {ve}, -{mean}, {mean}, {ve}"),
                 I(f"v_max_f32 {ve}, {f32(1e-5)}, {ve}"),
                 I(f"v_rsq_f32 {ke}, {ve}"),
                 I(f"v_permlane32_swap_b32 {a[8]}, {a[10]}"),
                 I(f"v_permlane32_swap_b32 {a[9]}, {a[11]}"),
                 I(f"v_mul_f32 {ke}, {f32(-LOG2E)}, {ke}")]
            pairs = [(0, 4), (1, 5), (2, 6), (3, 7), (8, 10), (9, 11)]
            for j in range(12):
                o.append(I(f"v_fmac_f32 {a[j]}, {mean}, {CS[j]}"))
            for k, (gi, ui) in enumerate(pairs):
                o.append(I(f"v_mul_f32 {Tm[k]}, {ke}, {a[gi]}"))
            for k, (gi, ui) in enumerate(pairs):
                o.append(I(f"v_exp_f32 {Tm[k]}, {Tm[k]}"))
                o.append(I(f"v_mul_f32 {a[gi]}, {a[gi]}, {a[ui]}"))
            for k in range(6):
                o.append(I(f"v_fma_f32 {Tm[k]}, {Tm[k]}, {ve}, {ve}"))
            for k in range(6):
                o.append(I(f"v_rcp_f32 {Tm[k]}, {Tm[k]}"))
            for k, (gi, ui) in enumerate(pairs):
                o.append(I(f"v_mul_f32 {Tm[k]}, {Tm[k]}, {a[gi]}"))
            for k in range(3):
                o.append(I(f"v_cvt_pk_bf16_f32 {HO[k]}, {Tm[2 * k]}, {Tm[2 * k + 1]}"))
            o.append(I(f"ds_write_b64 {vEW}, {HO[0:2]} offset:{(i & 1) * 3328}"))
            o.append(I(f"ds_write_b32 {vEW2}, {HO[2]} offset:{(i & 1) * 3328}"))
            return o
        stores = {}
        def pub(i):
            stores[i] = I(f"buffer_store_dwordx4 {EX}, {vGA}, {WS_}, {sGO} offen sc1")
            return [I(f"ds_read_b128 {EX}, {vER} offset:{(i & 1) * 3328}")], [stores[i], I(f"s_add_u32 {sGO}, {sGO}, {48 * 1024}")]
        flag = lambda i: [I(f"v_mov_b32 {vOne}, {i + 1}"), waitvm(stores[i]),
                          I(f"buffer_store_dword {vOne}, {vFO}, {WS_}, {sFO} offen sc1")]
        for i in range(3):
            p.add(polls[i][0]); p.add(polls[i][1])
            if i == 0:
                p.add(self.stamp(10))
            p.add(dma(i))
        p.add(polls[3][0])
        p.add(waitvm(last[0]))
        p("s_barrier")
        p.add(self.stamp(11))
        p.add([rd(0, ks) for ks in range(5)])
        for i in range(8):
            mf = []
            for ks in range(20):
                for T in range(3):
                    d = acc[i & 1][4 * T: 4 * T + 4]
                    mf.append(mfma(d, W13[ks][T], HF[(20 * i + ks) % 8], "0" if ks == 0 else d))
            r1 = [(rd(i, ks), max(0, 3 * (ks - 7))) for ks in range(5, 20)]
            side = [(stld(i), 2)]
            if i >= 2:
                side += [(x, 30) for x in flag(i - 2)]
            e = [(x, 3) for x in epi(i - 1)] if i else []
            p.add(weave(mf[:44], [r1, side, e]))
            p("s_waitcnt lgkmcnt(0)")
            if i < 7:
                p.add(waitvm(last[i + 1]))
            p("s_barrier")
            r2 = [rd(i + 1, ks) for ks in range(5)] if i < 7 else []
            r2 = [(x, max(0, 3 * (k + 13) - 44)) for k, x in enumerate(r2)]
            pb = pub(i - 1) if i else ([], [])
            side = pb[0]
            if i + 3 < 8:
                side = side + polls[i + 3][1] + dma(i + 3)
            tail = [(x, 6) for x in pb[1]]
            if i + 4 < 8:
                side = side + [polls[i + 4][0]]
            p.add(weave(mf[44:], [r2, tail, side]))
        p.add(self.stamp(12))
        p.add(epi(7))
        p.add(flag(6))
        p("s_waitcnt lgkmcnt(0)\ns_barrier")
        pb = pub(7)
        p.add(pb[0]); p.add(pb[1]); p.add(flag(7))
        p("s_waitcnt lgkmcnt(0)\ns_barrier")

    def phaseD(self):
        p = self.p
        self.mapping(256, "D")
        sCt, sPar, sU, sHS, sFS, sRO, sOO = sT[4], sT[5], sT[6], sT[7], sT[11], sT[12], sT[13]
        p(f"s_and_b32 {sCt}, {sMem}, 7\ns_lshr_b32 {sPar}, {sMem}, 3")
        W2 = [[A((ks * 5 + ct) * 4, 4) for ct in range(5)] for ks in range(12)]
        self.stage_w2(W2, sCt)
        p.add(self.stamp(13))
        v16, vF, vFA, vPW, vPR, vRA, vOA, vWant = [V(10 + i) for i in range(8)]
        HF = [V(20 + 48 * s, 48) for s in range(2)]
        acc = [V(116, 20), V(136, 20)]
        RES = V(156, 16)
        PR = V(172, 32)
        O = V(204, 4)
        RS, PB = 336, 5376
        p.add(self.calc(v16, L << 4))
        p.add(self.calc(vFA, (L & 15) << 7))
        p(f"s_mul_i32 {sU}, {sWave}, {PB}")
        p.add(self.calc(vPW, T16 * RS + (G4 << 4) + sU))
        p.add(self.calc(vF, div(L, 10)))
        p.add(self.calc(vWant, L - w(vF) * 10))
        p(f"s_lshl_b32 {sU}, {sWave}, 2")
        p.add(self.calc(vF, vmin(w(vF), 3) + sU))
        p.add(self.calc(vPR, w(vF) * RS + (w(vWant) << 5)))
        p(f"s_mul_i32 {sU}, {sCt}, 10")
        p.add(self.calc(vWant, w(vWant) + sU))
        p.add(self.calc(vRA, sel(L.lt(40), (w(vWant) << 8) + (w(vF) << 4), OOB)))
        p.add(self.calc(vOA, sel(L.lt(40), w(vF) * 1280 + (w(vWant) << 4), OOB)))
        p(f"""s_lshl_b32 {sU}, {sCl}, 3
              s_add_u32 {sU}, {sU}, {sPar}
              s_mul_i32 {sRO}, {sU}, 20480
              s_mov_b32 {sOO}, {sRO}
              s_add_u32 {sRO}, {sRO}, {HB}
              s_mul_i32 {sHS}, {sU}, 48
              s_mul_i32 {sU}, {sWave}, 12
              s_add_u32 {sHS}, {sHS}, {sU}
              s_lshl_b32 {sHS}, {sHS}, 10
              s_add_u32 {sHS}, {sHS}, {HH}
              s_lshl_b32 {sFS}, {sCl}, 2
              s_add_u32 {sFS}, {sFS}, {sWave}
              s_lshl_b32 {sFS}, {sFS}, 11
              s_add_u32 {sFS}, {sFS}, {FHH}""")
        sW = [sT[14], sT[15], sT[16], sT[17]]
        for i in range(4):
            p(f"s_add_u32 {sW[i]}, {sPar}, {2 * i + 1}")
        polls = {i: self.poll(vF, vFA, WS_, sFS, sW[i]) for i in range(4)}
        def loads(i):
            o = []
            for ks in range(12):
                o.append(I(f"buffer_load_dwordx4 {HF[i & 1][4 * ks: 4 * ks + 4]}, {v16}, {WS_}, {sHS} offen offset:{1024 * (ks & 3)} sc1"))
                if ks & 3 == 3:
                    o.append(I(f"s_add_u32 {sHS}, {sHS}, {4096 if ks < 11 else 96 * 1024 - 8192}"))
            o.append(I(f"buffer_load_dwordx4 {RES[4 * i: 4 * i + 4]}, {vRA}, {WS_}, {sRO} offen sc1"))
            o.append(I(f"s_add_u32 {sRO}, {sRO}, {2 * 20480}"))
            return o
        wr = lambda i: [I(f"ds_write_b128 {vPW}, {acc[i & 1][4 * ct: 4 * ct + 4]} offset:{(i & 1) * 4 * PB + 64 * ct}") for ct in range(5)]
        def fin(i):
            o = []
            for s in range(4):
                for h in range(2):
                    o.append(I(f"ds_read_b128 {PR[8 * s + 4 * h: 8 * s + 4 * h + 4]}, {vPR} offset:{(i & 1) * 4 * PB + s * PB + 16 * h}"))
            for j in range(4):
                o.append(I(f"v_lshlrev_b32 {O[j]}, 16, {RES[4 * i + j]}"))
                o.append(I(f"v_and_b32 {RES[4 * i + j]}, 0xffff0000, {RES[4 * i + j]}"))
            for j in range(8):
                o.append(I(f"v_add_f32 {PR[j]}, {PR[j]}, {PR[8 + j]}"))
            for j in range(8):
                o.append(I(f"v_add_f32 {PR[16 + j]}, {PR[16 + j]}, {PR[24 + j]}"))
            for j in range(8):
                o.append(I(f"v_add_f32 {PR[j]}, {PR[j]}, {PR[16 + j]}"))
            for j in range(8):
                o.append(I(f"v_add_f32 {PR[j]}, {PR[j]}, {O[j >> 1] if j % 2 == 0 else RES[4 * i + (j >> 1)]}"))
            for j in range(4):
                o.append(I(f"v_cvt_pk_bf16_f32 {O[j]}, {PR[2 * j]}, {PR[2 * j + 1]}"))
            o.append(I(f"buffer_store_dwordx4 {O}, {vOA}, {OUT_}, {sOO} offen"))
            o.append(I(f"s_add_u32 {sOO}, {sOO}, {2 * 20480}"))
            return o
        p.add(polls[0][0]); p.add(polls[0][1]); p.add(loads(0))
        p.add(polls[1][0])
        for i in range(4):
            mf = []
            for ks in range(12):
                for ct in range(5):
                    d = acc[i & 1][4 * ct: 4 * ct + 4]
                    mf.append(mfma(d, W2[ks][ct], HF[i & 1][4 * ks: 4 * ks + 4], "0" if ks == 0 else d))
            nxt = (polls[i + 1][1] + loads(i + 1) + ([polls[i + 2][0]] if i + 2 < 4 else [])) if i < 3 else []
            if i == 0:
                p.add(weave(mf, [nxt]))
            else:
                p.add(weave(mf[:24], [[(x, 3) for x in wr(i - 1)], nxt]))
                p("s_waitcnt lgkmcnt(0)\ns_barrier")
                p.add(weave(mf[24:], [fin(i - 1)]))
        p.add(self.stamp(14))
        p.add(wr(3))
        p("s_waitcnt lgkmcnt(0)\ns_barrier")
        p.add(fin(3))

    def dump_stamps(self):
        p = self.p
        p("s_waitcnt vmcnt(0)")
        p.add(self.stamp(15))
        p("s_waitcnt lgkmcnt(0)")
        for i in range(16):
            p(f"v_mov_b32 v{10 + i}, s{64 + 2 * i}")
        p(f"""s_lshl_b32 {sT[0]}, s2, 2
              s_add_u32 {sT[0]}, {sT[0]}, {sWave}
              s_lshl_b32 {sT[0]}, {sT[0]}, 6
              s_add_u32 {sT[0]}, {sT[0]}, {DIAG}""")
        p.add(self.calc(V(26), sel(L.eq(0), 0, OOB)))
        for i in range(4):
            p(f"buffer_store_dwordx4 v[{10 + 4 * i}:{13 + 4 * i}], v26, {WS_}, {sT[0]} offen offset:{16 * i}")

    def build(self):
        p = self.p
        self.prologue()
        p(f"""s_cmp_ge_u32 {sMem}, 12
              s_cbranch_scc1 Lhelper
              s_cmp_ge_u32 {sMem}, 8
              s_cbranch_scc1 Lq""")
        self.gemmA("kv")
        p("s_branch Ljoin\nLq:")
        self.gemmA("q")
        p("s_branch Ljoin\nLhelper:")
        self.helper()
        p("Ljoin:\n.RESET")
        self.phaseB()
        self.phaseC()
        self.phaseD()
        if self.c.stamps:
            self.dump_stamps()
        body = p.finish()
        head = open(f"cdna_kernels/{NAME}.s.ref").read().split("; Override launch")[0]
        return f"""{head}; @launch grid=(256,1,1) block=(256,1,1) lds=163840
.amdgcn_target "amdgcn-amd-amdhsa--gfx950"
.text
.globl {NAME}_kernel
.p2align 8
.type {NAME}_kernel,@function
{NAME}_kernel:
{body}
Lexit:
    s_endpgm
""" + "\n".join(self.slow) + f"""
Lcodeend:
.section .rodata,"a"
.p2align 6
.amdhsa_kernel {NAME}_kernel
  .amdhsa_next_free_vgpr 512
  .amdhsa_next_free_sgpr 102
  .amdhsa_accum_offset 256
  .amdhsa_group_segment_fixed_size 0
  .amdhsa_kernarg_size 80
  .amdhsa_user_sgpr_count 2
  .amdhsa_user_sgpr_kernarg_segment_ptr 1
  .amdhsa_system_sgpr_workgroup_id_x 1
.end_amdhsa_kernel
"""


def make(**kw):
    c = Cfg()
    for k, v in kw.items():
        assert hasattr(c, k), k
        setattr(c, k, v)
    return Gen(c).build()


if __name__ == "__main__":
    out = sys.argv[1] if len(sys.argv) > 1 else f"cdna_kernels/{NAME}.s"
    kw = {}
    for a in sys.argv[2:]:
        k, v = a.split("=")
        kw[k] = int(v)
    open(out, "w").write(make(**kw))
```

```python
import sys, struct
from asmk import *
from lane import *

NAME = "sequential_preLN__linear_attn_block__glu_gated_swiglu__prompt"

class Cfg:
    stamps = False
    mapA = 256
    mapC = 256
    rot = 0
    spin = 60000
    touchW = 0
    probe = -1
    probewg = 0

STATS = 0x0
KVO   = 0x4000
HST   = 0x12000
ZEND  = 0x16000
FLAGS = 0x20000
FKV, FH, FHH, FPQ = 0x20000, 0x40000, 0x60000, 0x80000
PQ    = 0x100000
HB    = 0x400000
HH    = 0x700000
DIAG  = 0xE00000
WSZ   = 0x1000000
OOB   = 0x40000000

X_, WQ_, WO_, W1_, W3_, W2_, OUT_, DBG_, WS_ = [Reg("s", 8 + 4 * i, 4) for i in range(9)]
sWave, sCl, sMem, sSpin = "s3", "s4", "s5", "s6"
sT = [f"s{i}" for i in range(44, 64)]
V = lambda b, n=1: Reg("v", b, n)
A = lambda b, n=1: Reg("a", b, n)
f32 = lambda x: hex(struct.unpack("<I", struct.pack("<f", x))[0])
LOG2E = 1.4426950408889634

vLane = V(1)
vTmp = V(2, 8)
L = w(vLane)
T16, G4 = L & 15, L >> 4


def mfma(d, a, b, c):
    return I(f"v_mfma_f32_16x16x32_bf16 {d}, {a}, {b}, {c}")


class Gen:
    def __init__(self, cfg):
        self.c = cfg
        self.p = Prog()
        self.slow = []
        self.nlab = 0
        self.nstamp = 0

    def calc(self, dst, e):
        return compile_expr(dst, e, vTmp)

    def stamp(self, i):
        return [I(f"s_memrealtime s[{64 + 2 * i}:{65 + 2 * i}]")] if self.c.stamps else []

    def poll(self, vdst, vaddr, srd, soff, want):
        ld = f"buffer_load_dword {vdst}, {vaddr}, {srd}, {soff} offen sc1"
        self.nlab += 1
        k = self.nlab
        cmp_ = f"v_cmp_gt_u32 vcc, {want}, {vdst}"
        self.slow.append(f"""Lslow{k}:
    s_cmp_eq_u32 {sSpin}, 0
    s_cbranch_scc1 Lback{k}
    s_sub_u32 {sSpin}, {sSpin}, 1
    {ld}
    s_waitcnt vmcnt(0)
    {cmp_}
    s_cbranch_vccnz Lslow{k}
    s_branch Lback{k}""")
        return I(ld), [I(cmp_), I(f"s_cbranch_vccnz Lslow{k}"), I(f"Lback{k}:")]

    def mapping(self, mode, phase):
        p = self.p
        if mode == 256:
            p(f"""s_and_b32 {sCl}, s2, 7
                  s_lshl_b32 {sCl}, {sCl}, 1
                  s_lshr_b32 {sT[0]}, s2, 7
                  s_add_u32 {sCl}, {sCl}, {sT[0]}
                  s_bfe_u32 {sMem}, s2, 0x40003""")
        else:
            p(f"""s_and_b32 {sCl}, s2, 6
                  s_lshl_b32 {sCl}, {sCl}, 1
                  s_lshr_b32 {sT[0]}, s2, 6
                  s_add_u32 {sCl}, {sCl}, {sT[0]}
                  s_and_b32 {sT[0]}, s2, 1
                  s_bfe_u32 {sMem}, s2, 0x30003""")
            if phase == "A":
                p(f"""s_lshl_b32 {sT[1]}, {sT[0]}, 2
                      s_lshl_b32 {sT[2]}, {sT[0]}, 1
                      s_add_u32 {sT[3]}, {sT[2]}, 4
                      s_add_u32 {sT[2]}, {sT[2]}, 6
                      s_cmp_lt_u32 {sMem}, 6
                      s_cselect_b32 {sT[2]}, {sT[3]}, {sT[2]}
                      s_cmp_lt_u32 {sMem}, 4
                      s_cselect_b32 {sT[2]}, {sT[1]}, {sT[2]}
                      s_add_u32 {sMem}, {sMem}, {sT[2]}""")
            else:
                p(f"""s_lshl_b32 {sT[0]}, {sT[0]}, 3
                      s_add_u32 {sMem}, {sMem}, {sT[0]}""")

    def prologue(self):
        p = self.p
        p.add(self.stamp(0))
        p(f"""s_cmp_ge_u32 s2, 256
              s_cbranch_scc1 Lexit
              s_load_dwordx2 {X_[0:2]}, s[0:1], 0
              s_load_dwordx2 {WQ_[0:2]}, s[0:1], 8
              s_load_dwordx16 s[80:95], s[0:1], 16""" if not self.c.stamps else
          f"""s_cmp_ge_u32 s2, 256
              s_cbranch_scc1 Lexit
              s_load_dwordx2 {X_[0:2]}, s[0:1], 0
              s_load_dwordx2 {WQ_[0:2]}, s[0:1], 8
              s_load_dwordx16 s[80:95], s[0:1], 16""")
        for srd, size in ((X_, 2621440), (WQ_, 2457600), (WO_, 819200), (W1_, 1966080), (W3_, 1966080),
                          (W2_, 1966080), (OUT_, 2621440), (DBG_, 256), (WS_, WSZ)):
            p(f"s_mov_b32 {srd[2]}, {size}\ns_mov_b32 {srd[3]}, 0x20000")
        p(f"""v_and_b32 {vLane}, 63, v0
              v_lshrrev_b32 v2, 6, v0
              s_mov_b32 {sSpin}, {self.c.spin}
              v_readfirstlane_b32 {sWave}, v2""")
        self.mapping(self.c.mapA, "A")

    def late_srds(self):
        out = []
        for srd, at in ((WO_, 80), (W1_, 84), (W3_, 86), (W2_, 88), (OUT_, 90), (DBG_, 92), (WS_, 94)):
            out.append(I(f"s_mov_b64 {srd[0:2]}, s[{at}:{at + 1}]"))
        return out

    def gemmA(self, kind):
        p, c = self.p, self.c
        kv = kind == "kv"
        XREG, WREG, WSLOT, PLANE, CSX = 0, 49152, 20512, 10256, 110688
        vDX, vDW, vAX, vAW = V(10, 4), V(14, 5), V(19, 2), V(21, 4)
        ones = V(26, 4)
        FX = [V(30 + 36 * s, 16) for s in range(2)]
        FW = [V(46 + 36 * s, 20) for s in range(2)]
        acc = [[V(102 + 20 * m + 4 * b, 4) for b in range(5)] for m in range(4)]
        cs = [V(182 + 4 * b, 4) for b in range(5)]
        st = V(202, 48)
        vF, vFA = V(250), V(251)
        vSA = V(252)
        vCA = V(253)
        sWm, sWn, sXb, sWb, sK, sX, sW, sMX, sMW, sU = sT[4:14]
        p(".RESET")
        p(f"""s_lshr_b32 {sWm}, {sWave}, 1
              s_and_b32 {sWn}, {sWave}, 1""")
        for n in range(4):
            p.add(self.calc(vDX[n], ((L >> 3) + 8 * n) * 1280 + (((L & 7) ^ (((L >> 4) + 4 * n) & 7)) << 4)))
        for n in range(5):
            u = L + 64 * n
            p.add(self.calc(vFA, div(u, 10)))
            q = w(vFA)
            row = (q & 19) | ((q & 4) << 1) | ((q & 8) >> 1)
            p.add(self.calc(vDW[n], row * 3840 + ((u - q * 10) << 4)))
        p(f"""s_lshl_b32 {sXb}, {sCl}, 7
              s_lshl_b32 {sU}, {sWave}, 5
              s_add_u32 {sXb}, {sXb}, {sU}
              s_mul_i32 {sXb}, {sXb}, 1280
              s_mul_i32 {sWb}, {sWn}, {32 * 3840}""")
        if kv:
            p(f"""s_mul_i32 {sU}, {sMem}, 160
                  s_add_u32 {sWb}, {sWb}, {sU}
                  s_mul_i32 {sU}, {sWm}, 1280
                  s_add_u32 {sWb}, {sWb}, {sU}
                  s_add_u32 {sWb}, {sWb}, 1280""")
        else:
            p(f"""s_sub_u32 {sU}, {sMem}, 8
                  s_mul_i32 {sU}, {sU}, 320
                  s_add_u32 {sWb}, {sWb}, {sU}
                  s_mul_i32 {sU}, {sWm}, 160
                  s_add_u32 {sWb}, {sWb}, {sU}""")
        p(f"""s_lshl_b32 {sMX}, {sWave}, 12
              s_mul_i32 {sMW}, {sWm}, {PLANE}
              s_mul_i32 {sU}, {sWn}, 5120
              s_add_u32 {sMW}, {sMW}, {sU}
              s_add_u32 {sMW}, {sMW}, {WREG}""")
        if c.rot:
            p(f"""s_and_b32 {sK}, s2, 7
                  s_mul_i32 {sK}, {sK}, 5
                  s_lshr_b32 {sK}, {sK}, 2""")
        else:
            p(f"s_mov_b32 {sK}, 0")

        dmas = {}
        def dma(i):
            sl = i % 3
            o = [I(f"s_lshl_b32 {sU}, {sK}, 7"), I(f"s_add_u32 {sX}, {sXb}, {sU}"),
                 I(f"s_mul_i32 {sU}, {sK}, {64 * 3840}"), I(f"s_add_u32 {sW}, {sWb}, {sU}"),
                 I(f"s_add_u32 {sK}, {sK}, 1"), I(f"s_cmp_eq_u32 {sK}, 10"), I(f"s_cselect_b32 {sK}, 0, {sK}")]
            order = [("x", 0), ("w", 0), ("w", 1), ("x", 1), ("w", 2), ("x", 2), ("w", 3), ("x", 3), ("w", 4)]
            for k, n in order:
                if k == "x":
                    o.append(I(f"s_add_u32 m0, {sMX}, {XREG + sl * 16384 + n * 1024}"))
                    o.append(I(f"buffer_load_dwordx4 {vDX[n]}, {X_}, {sX} offen lds"))
                else:
                    o.append(I(f"s_add_u32 m0, {sMW}, {sl * WSLOT + n * 1024}"))
                    o.append(I(f"buffer_load_dwordx4 {vDW[n]}, {WQ_}, {sW} offen lds"))
            dmas[i] = o[-1]
            return o

        p("s_waitcnt lgkmcnt(0)")
        p.add(dma(0))
        p.add(self.late_srds())
        g, r, cq = L >> 4, (L >> 2) & 3, L & 3
        for ss in range(2):
            p(f"s_xor_b32 {sU}, {sWm}, {ss}\ns_lshl_b32 {sT[14]}, {sU}, 2\ns_lshl_b32 {sT[15]}, {sWm}, 13")
            p.add(self.calc(vAX[ss], (T16 << 7) + (((G4 + sT[14]) ^ ((T16 >> 1) & 7)) << 4) + sT[15] + XREG))
            if kv:
                p(f"s_mul_i32 {sT[14]}, {sU}, 5120\ns_mul_i32 {sT[15]}, {sWn}, 80\ns_add_u32 {sT[14]}, {sT[14]}, {sT[15]}")
            else:
                p(f"s_mul_i32 {sT[14]}, {sU}, 5120\ns_mul_i32 {sT[15]}, {sWn}, {PLANE}\ns_add_u32 {sT[14]}, {sT[14]}, {sT[15]}")
            p.add(self.calc(vFA, (((g >> 1) << 4) + ((g & 1) << 2) + r) * 160 + sT[14] + WREG))
            p.add(self.calc(vAW[2 * ss], w(vFA) + (cq << 3)))
            if kv:
                p.add(self.calc(vAW[2 * ss + 1], w(vFA) + 32 + (cq & 1) * 40 + (cq >> 1) * PLANE))
        p.add(dma(1))
        for i in range(4):
            p(f"v_mov_b32 {ones[i]}, 0x3f803f80")
        p.add(self.calc(vFA, L << 2))
        p(f"""s_lshl_b32 {sT[14]}, {sCl}, 9
              s_lshl_b32 {sT[15]}, {sWm}, 8
              s_add_u32 {sT[14]}, {sT[14]}, {sT[15]}""")
        p.add(self.calc(vSA, ((G4 << 4) if kv else (T16 << 2)) + sT[14] + STATS))
        p(f"s_mul_i32 {sT[14]}, {sWave}, 5120")
        p.add(self.calc(vCA, (L << (2 if kv else 4)) + sT[14] + CSX))
        p.add(dma(2))

        def reads(i, ss):
            sl, s = i % 3, ss
            o = []
            def wr(b):
                if kv:
                    a, off = (vAW[2 * ss], (b >> 1) * PLANE + (b & 1) * 40) if b < 4 else (vAW[2 * ss + 1], 0)
                else:
                    a, off = vAW[2 * ss], 32 * b
                return [I(f"ds_read_b64_tr_b16 {FW[s][4 * b + 2 * hf: 4 * b + 2 * hf + 2]}, {a} offset:{sl * WSLOT + off + hf * 1280}")
                        for hf in range(2)]
            xr = lambda m: [I(f"ds_read_b128 {FX[s][4 * m: 4 * m + 4]}, {vAX[ss]} offset:{sl * 16384 + m * 2048}")]
            o += xr(0)
            for b in range(5):
                o += wr(b)
            for m in range(1, 4):
                o += xr(m)
            return o

        def mm(i, ss):
            o = []
            first = i == 0 and ss == 0
            for m in range(4):
                for b in range(5):
                    x, wv = FX[ss][4 * m: 4 * m + 4], FW[ss][4 * b: 4 * b + 4]
                    cc = "0" if first else acc[m][b]
                    o.append(mfma(acc[m][b], x, wv, cc) if kv else mfma(acc[m][b], wv, x, cc))
            if ss == 0 or i == 9:
                for b in range(5):
                    wv = FW[ss][4 * b: 4 * b + 4]
                    cc = "0" if first else cs[b]
                    o.append(mfma(cs[b], ones, wv, cc) if kv else mfma(cs[b], wv, ones, cc))
            return o

        p.add(waitvm(dmas[0]))
        p("s_barrier")
        p.add(self.stamp(1))
        p.add(reads(0, 0))
        f0ld, f0chk = self.poll(vF, vFA, DBG_, 0, 1)
        csp = V(30, 20)
        for i in range(10):
            extra = []
            if i == 7:
                extra = [f0ld]
            p.add(weave(mm(i, 0), [spread(reads(i, 1), 0, 14), [(x, 16) for x in extra]]))
            if i < 9:
                p("s_waitcnt lgkmcnt(0)")
                p.add(waitvm(dmas[i + 1]))
                p("s_barrier")
                side = []
                if i + 3 < 10:
                    side = dma(i + 3)
                if i == 8:
                    side = [(x, 8) for x in ([I(f"ds_write_b32 {vCA}, {cs[b][0]} offset:{256 * b}") for b in range(5)] if kv else
                                             [I(f"ds_write_b128 {vCA}, {cs[b]} offset:{1024 * b}") for b in range(5)])]
                    side += f0chk
                    if kv:
                        for m in range(4):
                            side.append(I(f"buffer_load_dwordx4 {st[4 * m: 4 * m + 4]}, {vSA}, {WS_}, 0 offen offset:{64 * m} sc1"))
                        side.append(I(f"s_mov_b32 {sU}, 8192"))
                        for m in range(4):
                            side.append(I(f"buffer_load_dwordx4 {st[16 + 4 * m: 20 + 4 * m]}, {vSA}, {WS_}, {sU} offen offset:{64 * m} sc1"))
                    else:
                        for m in range(4):
                            side.append(I(f"buffer_load_dword {st[m]}, {vSA}, {WS_}, 0 offen offset:{64 * m} sc1"))
                        side.append(I(f"s_mov_b32 {sU}, 8192"))
                        for m in range(4):
                            side.append(I(f"buffer_load_dword {st[4 + m]}, {vSA}, {WS_}, {sU} offen offset:{64 * m} sc1"))
                p.add(weave(mm(i, 1), [spread(reads(i + 1, 0), 0, 14), side]))
            else:
                p("s_waitcnt lgkmcnt(0)\ns_barrier")
                rd = [I(f"v_xor_b32 {vCA}, 0, {vCA}")]
                p(f"""s_xor_b32 {sU}, {sWave}, 2
                      s_sub_u32 {sU}, {sU}, {sWave}
                      s_mul_i32 {sU}, {sU}, 5120
                      v_add_u32 {vCA}, {sU}, {vCA}""")
                rd = ([I(f"ds_read_b32 {csp[b]}, {vCA} offset:{256 * b}") for b in range(5)] if kv else
                      [I(f"ds_read_b128 {csp[4 * b: 4 * b + 4]}, {vCA} offset:{1024 * b}") for b in range(5)])
                p.add(weave(mm(i, 1), [rd]))
        p.add(self.stamp(2))
        sEps, sOne = Reg("s", 60, 2), Reg("s", 62, 2)
        p(f"s_mov_b32 {sEps[0]}, {f32(1e-6)}\ns_mov_b32 {sEps[1]}, {f32(1e-6)}")
        p(f"s_mov_b32 {sOne[0]}, {f32(LOG2E)}\ns_mov_b32 {sOne[1]}, {f32(LOG2E)}")
        T = V(66, 36)
        if kv:
            self.epiKV(acc, cs, csp, st, T, sEps, sOne, sWm, sWn, sU)
        else:
            self.epiQ(acc, cs, csp, st, T, sEps, sOne, sWm, sWn, sU)

    def phi4(self, a, out2, RS, RSL, T, sEps, bc):
        o = []
        t, s = T[0:4], T[4:8]
        for h in range(2):
            pr = slice(2 * h, 2 * h + 2)
            rs, sl = bc(RS, h), bc(RSL, h)
            o.append(I(f"v_pk_mul_f32 {s[pr]}, {a[pr]}, {sl[0]}{sl[1][0]}"))
            o.append(I(f"v_pk_fma_f32 {t[pr]}, {a[pr]}, {rs[0]}, {sEps}{rs[1][1]}"))
        for i in range(4):
            o.append(I(f"v_exp_f32 {s[i]}, {s[i]} clamp"))
        for i in range(4):
            o.append(I(f"v_max_f32 {t[i]}, {sEps[0]}, {t[i]}"))
        for h in range(2):
            pr = slice(2 * h, 2 * h + 2)
            o.append(I(f"v_pk_add_f32 {t[pr]}, {t[pr]}, {s[pr]}"))
        for h in range(2):
            o.append(I(f"v_cvt_pk_bf16_f32 {out2[h]}, {t[2 * h]}, {t[2 * h + 1]}"))
        return o

    def epiKV(self, acc, cs, csp, st, T, sEps, sLog, sWm, sWn, sU):
        p = self.p
        RS, NM, RSL = st[0:16], st[16:32], st[32:48]
        C = V(50, 6)
        for b in range(5):
            p(f"v_add_f32 {C[b]}, {cs[b][0]}, {csp[b]}")
        for h in range(8):
            p(f"v_pk_mul_f32 {RSL[2 * h: 2 * h + 2]}, {RS[2 * h: 2 * h + 2]}, {sLog}")
        P = [V(182, 8), V(190, 8), V(10, 8), V(18, 8), V(30, 8), V(38, 8)]
        p(f"v_and_b32 {T[30]}, 8, {vLane}\nv_cmp_eq_u32 vcc, 0, {T[30]}\nv_mov_b32 {T[31]}, 0x3f803f80")
        k = 0
        for m in range(4):
            bc = lambda R_, h: (R_[4 * m + 2 * h: 4 * m + 2 * h + 2], ("", ""))
            for b in range(5):
                a = acc[m][b]
                cp = C[b & ~1: (b & ~1) + 2]
                sel_ = f" op_sel:[0,{b & 1},0] op_sel_hi:[1,{b & 1},1]"
                for h in range(2):
                    p(f"v_pk_fma_f32 {a[2 * h: 2 * h + 2]}, {NM[4 * m + 2 * h: 4 * m + 2 * h + 2]}, {cp}, {a[2 * h: 2 * h + 2]}{sel_}")
            for b in (0, 1, 4):
                p.add(self.phi4(acc[m][b], P[b][2 * m: 2 * m + 2], RS, RSL, T[8 * (k % 3): 8 * (k % 3) + 8], sEps, bc)); k += 1
            for b in (2, 3, 4):
                a = acc[m][b]
                d = P[5 if b == 4 else b][2 * m: 2 * m + 2]
                for h in range(2):
                    p(f"v_pk_mul_f32 {a[2 * h: 2 * h + 2]}, {a[2 * h: 2 * h + 2]}, {RS[4 * m + 2 * h: 4 * m + 2 * h + 2]}")
                for h in range(2):
                    p(f"v_cvt_pk_bf16_f32 {d[h]}, {a[2 * h]}, {a[2 * h + 1]}")
                if b == 4:
                    for h in range(2):
                        p(f"v_cndmask_b32 {d[h]}, {d[h]}, {T[31]}, vcc")
        prods = [(0, 2), (1, 3), (0, 5), (1, 5), (4, 2), (4, 3), (4, 5)]
        Dk = [V(102 + 4 * i, 4) for i in range(7)]
        for s in range(2):
            for i, (a, b) in enumerate(prods):
                p.add(mfma(Dk[i], P[a][4 * s: 4 * s + 4], P[b][4 * s: 4 * s + 4], "0" if s == 0 else Dk[i]))
        DUMP = 16384
        vI = V(134, 7)
        p(f"""s_mul_i32 {sU}, {sWm}, 7168
              s_mul_i32 {sT[14]}, {sWn}, 3584
              s_add_u32 {sU}, {sU}, {sT[14]}""")
        dump = (L << 4) + DUMP
        rowB = lambda lo: sel(T16.eq(0), 64, sel(((T16 >> 2)).eq(lo), (T16 & 3) << 4, OOB))
        p.add(self.calc(vI[0], (G4 << 8) + (T16 << 4) + sU))
        p.add(self.calc(vI[2], vmin(G4 * 80 + rowB(2) + 1280 + sU, dump)))
        p.add(self.calc(vI[3], vmin(G4 * 80 + rowB(3) + (1280 + 1792) + sU, dump)))
        p.add(self.calc(vI[4], sel(G4.eq(0), (T16 << 4) + 1024 + sU, dump)))
        p.add(self.calc(vI[5], sel(G4.eq(1), (T16 << 4) + (1024 + 1792) + sU, dump)))
        p.add(self.calc(vI[6], vmin(sel(G4.eq(0), rowB(2), sel(G4.eq(1), rowB(3) + 1792, OOB)) + (1280 + 320) + sU, dump)))
        p(f"ds_write_b128 {vI[0]}, {Dk[0]}\nds_write_b128 {vI[0]}, {Dk[1]} offset:1792")
        for i in range(2, 7):
            p(f"ds_write_b128 {vI[i]}, {Dk[i]}")
        vR, vG, vGl = V(142), V(143), V(144)
        p(f"s_mul_i32 {sU}, {sWave}, 1792")
        p.add(self.calc(vR, (L << 2) + sU))
        p(f"""s_lshl_b32 {sT[14]}, {sMem}, 2
              s_add_u32 {sT[14]}, {sT[14]}, {sWave}
              s_mul_i32 {sT[14]}, {sT[14]}, 1792
              s_add_u32 {sT[14]}, {sT[14]}, {KVO}""")
        p.add(self.calc(vG, L << 2))
        p.add(self.calc(vGl, sel(L.lt(36), L << 2, OOB)))
        p("s_waitcnt lgkmcnt(0)\ns_barrier")
        Y = V(146, 14)
        for i in range(7):
            p(f"ds_read2st64_b32 {Y[2 * i: 2 * i + 2]}, {vR} offset0:{i} offset1:{28 + i}")
        for i in range(7):
            p(f"v_add_f32 {Y[2 * i]}, {Y[2 * i]}, {Y[2 * i + 1]}")
            p(f"buffer_atomic_add_f32 {Y[2 * i]}, {vG if i < 6 else vGl}, {WS_}, {sT[14]} offen offset:{256 * i}")
        p.add(self.stamp(3))
        p(f"""s_lshl_b32 {sU}, {sMem}, 4
              s_add_u32 {sU}, {sU}, {sCl}
              s_lshl_b32 {sU}, {sU}, 7
              s_add_u32 {sU}, {sU}, {FKV}""")
        p(f"s_cmp_eq_u32 {sWave}, 0\ns_cselect_b32 {sT[14]}, 8, 0")
        p.add(self.calc(vG, sel(L.lt(sT[14]), L << 14, OOB)))
        p(f"""v_mov_b32 {vR}, 1
              s_waitcnt vmcnt(0)
              s_barrier
              buffer_store_dword {vR}, {vG}, {WS_}, {sU} offen sc1""")

    def epiQ(self, acc, cs, csp, st, T, sEps, sLog, sWm, sWn, sU):
        p = self.p
        RS, NM, RSL = st[0:4], st[4:8], st[8:12]
        for b in range(5):
            for h in range(2):
                p(f"v_pk_add_f32 {cs[b][2 * h: 2 * h + 2]}, {cs[b][2 * h: 2 * h + 2]}, {csp[4 * b + 2 * h: 4 * b + 2 * h + 2]}")
        for h in range(2):
            p(f"v_pk_mul_f32 {RSL[2 * h: 2 * h + 2]}, {RS[2 * h: 2 * h + 2]}, {sLog}")
        v16, v8 = V(10), V(11)
        p.add(self.calc(v16, L << 4))
        p.add(self.calc(v8, L << 3))
        p(f"""s_lshl_b32 {sU}, {sCl}, 3
              s_lshl_b32 {sT[14]}, {sWm}, 2
              s_add_u32 {sU}, {sU}, {sT[14]}
              s_lshl_b32 {sU}, {sU}, 2
              s_add_u32 {sU}, {sU}, {sMem}
              s_sub_u32 {sU}, {sU}, 8
              s_lshl_b32 {sU}, {sU}, 1
              s_add_u32 {sU}, {sU}, {sWn}
              s_mul_i32 {sU}, {sU}, 2560
              s_add_u32 {sU}, {sU}, {PQ}""")
        k = 0
        for m in range(4):
            O = V(12 + 10 * (m & 1), 10) if False else V(30 + 12 * (m & 1), 10)
            e = m & 1
            bc = lambda R_, h: (R_[m & ~1: (m & ~1) + 2],
                                (f" op_sel:[0,{e}] op_sel_hi:[1,{e}]", f" op_sel:[0,{e},0] op_sel_hi:[1,{e},1]"))
            for b in range(5):
                a = acc[m][b]
                for h in range(2):
                    p(f"v_pk_fma_f32 {a[2 * h: 2 * h + 2]}, {cs[b][2 * h: 2 * h + 2]}, {NM[m & ~1: (m & ~1) + 2]}, {a[2 * h: 2 * h + 2]}"
                      f" op_sel:[0,{e},0] op_sel_hi:[1,{e},1]")
                p.add(self.phi4(a, O[2 * b: 2 * b + 2], RS, RSL, T[8 * (k % 3): 8 * (k % 3) + 8], sEps, bc)); k += 1
            p(f"""buffer_store_dwordx4 {O[0:4]}, {v16}, {WS_}, {sU} offen sc1
                  buffer_store_dwordx4 {O[4:8]}, {v16}, {WS_}, {sU} offen offset:1024 sc1
                  buffer_store_dwordx2 {O[8:10]}, {v8}, {WS_}, {sU} offen offset:2048 sc1
                  s_add_u32 {sU}, {sU}, {8 * 2560}""")
        p.add(self.stamp(3))
        p(f"""s_lshl_b32 {sU}, {sCl}, 2
              s_add_u32 {sU}, {sU}, {sMem}
              s_sub_u32 {sU}, {sU}, 8
              s_lshl_b32 {sU}, {sU}, 2
              s_add_u32 {sU}, {sU}, {sWave}
              s_lshl_b32 {sU}, {sU}, 7
              s_add_u32 {sU}, {sU}, {FPQ}""")
        p.add(self.calc(v16, sel(L.eq(0), 0, OOB)))
        p(f"""v_mov_b32 {v8}, 1
              s_waitcnt vmcnt(0)
              buffer_store_dword {v8}, {v16}, {WS_}, {sU} offen sc1
              s_barrier""")

    def helper(self):
        p = self.p
        p(".RESET")
        sH, sU = sT[4], sT[5]
        vA, vB, vZ = V(10), V(11), V(12, 4)
        Xr = V(16, 40)
        p(f"""s_lshl_b32 {sH}, {sCl}, 2
              s_add_u32 {sH}, {sH}, {sMem}
              s_sub_u32 {sH}, {sH}, 12""")
        p.add(self.calc(vA, (L >> 3) * 1280 + ((L & 7) << 4)))
        p(f"""s_lshl_b32 {sU}, {sH}, 2
              s_add_u32 {sU}, {sU}, {sWave}
              s_mul_i32 {sT[6]}, {sU}, {8 * 1280}
              s_waitcnt lgkmcnt(0)""")
        for i in range(10):
            p(f"buffer_load_dwordx4 {Xr[4 * i: 4 * i + 4]}, {vA}, {X_}, {sT[6]} offen offset:{128 * i}")
        p.add(self.late_srds())
        p(f"""s_getpc_b64 s[60:61]
              Lpc:
              s_sub_u32 s60, s60, Lpc-{NAME}_kernel
              s_subb_u32 s61, s61, 0
              s_and_b32 {sT[7]}, {sU}, 31
              s_lshl_b32 {sT[7]}, {sT[7]}, 11""")
        p.add(self.calc(vB, ((L & 15) << 7) + sT[7]))
        p(f"v_min_u32 {vB}, Lcodeend-{NAME}_kernel-4, {vB}")
        p(f"global_load_dword {V(56)}, {vB}, s[60:61]")
        for i in range(4):
            p(f"v_mov_b32 {vZ[i]}, 0")
        per = (ZEND - KVO) // 256
        assert per % 16 == 0
        p.add(self.calc(vB, sel(L.lt(per // 16), L << 4, OOB)))
        p(f"""s_mul_i32 {sT[7]}, {sU}, {per}
              s_add_u32 {sT[7]}, {sT[7]}, {KVO}
              buffer_store_dwordx4 {vZ}, {vB}, {WS_}, {sT[7]} offen sc1""")
        p.add(self.calc(vB, sel(L.lt(16), L << 7, OOB)))
        p(f"""s_lshl_b32 {sT[7]}, {sU}, 11
              s_add_u32 {sT[7]}, {sT[7]}, {FLAGS}
              buffer_store_dword {vZ[0]}, {vB}, {WS_}, {sT[7]} offen sc1""")
        s1, s2, t = V(60), V(61), V(62)
        p(f"v_mov_b32 {s1}, 0\nv_mov_b32 {s2}, 0\nv_mov_b32 {t}, 0x3f803f80")
        for i in range(40):
            p(f"v_dot2_f32_bf16 {s1}, {Xr[i]}, {t}, {s1}")
            p(f"v_dot2_f32_bf16 {s2}, {Xr[i]}, {Xr[i]}, {s2}")
        for mod in ("quad_perm:[1,0,3,2]", "quad_perm:[2,3,0,1]", "row_half_mirror"):
            p(f"v_add_f32_dpp {s1}, {s1}, {s1} {mod} row_mask:0xf bank_mask:0xf")
            p(f"v_add_f32_dpp {s2}, {s2}, {s2} {mod} row_mask:0xf bank_mask:0xf")
        p(f"""v_mul_f32 {s1}, {f32(-1.0 / 640)}, {s1}
              v_mul_f32 {s2}, {f32(1.0 / 640)}, {s2}
              v_fma_f32 {s2}, -{s1}, {s1}, {s2}
              v_max_f32 {s2}, 0, {s2}
              v_add_f32 {s2}, {f32(1e-5)}, {s2}
              v_rsq_f32 {s2}, {s2}""")
        p.add(self.calc(vB, sel((L & 7).lt(2), ((L & 7) << 13) + ((L >> 3) << 2), OOB)))
        p(f"""v_and_b32 {t}, 7, {vLane}
              v_cmp_eq_u32 vcc, 0, {t}
              v_cndmask_b32 {s1}, {s1}, {s2}, vcc
              s_lshl_b32 {sT[7]}, {sU}, 5
              buffer_store_dword {s1}, {vB}, {WS_}, {sT[7]} offen sc1""")
        p(f"s_cmp_eq_u32 {sWave}, 0\ns_cselect_b32 {sT[7]}, 1, 0")
        p.add(self.calc(vB, sel(L.lt(sT[7]), 0, OOB)))
        p(f"""v_mov_b32 {t}, 1
              s_lshl_b32 {sT[7]}, {sH}, 2
              s_waitcnt vmcnt(0)
              s_barrier
              buffer_store_dword {t}, {vB}, {DBG_}, {sT[7]} offen sc1""")
        p.add(self.stamp(1))
        p.add(self.calc(vA, L << 2))
        ld, chk = self.poll(vB, vA, DBG_, 0, 1)
        p("s_sleep 32")
        p.add(ld); p.add(chk)
        p.add(self.stamp(2)); p.add(self.stamp(3))

    def stage_wo(self, sCg):
        p = self.p
        vD, vR0, vR1 = V(10), V(11), V(12)
        sS, sM = sT[8], sT[9]
        p.add(self.calc(vD, (L >> 4) * 1280 + (((L & 15) ^ ((L >> 4) << 2)) << 4)))
        g, r, cq = L >> 4, (L >> 2) & 3, L & 3
        p(f"s_lshl_b32 {sM}, {sWave}, 2")
        p.add(self.calc(vR0, (((g << 2) + r) << 8) + (((cq + sM) ^ (r << 2)) << 4)))
        p.add(self.calc(vR1, ((r * 20 + 16 + g) << 8) + (((cq + sM) ^ (g << 2)) << 4)))
        p(f"""s_lshl_b32 {sS}, {sCg}, 8
              s_mul_i32 {sM}, {sWave}, {40 * 1280}
              s_add_u32 {sS}, {sS}, {sM}
              s_mul_i32 {sM}, {sWave}, 10240""")
        last = {}
        def dma(cn):
            for n in range(10):
                p(f"s_add_u32 m0, {sM}, {(cn % 3) * 40960 + n * 1024}")
                last[cn] = p(f"buffer_load_dwordx4 {vD}, {WO_}, {sS} offen lds")
                p(f"s_add_u32 {sS}, {sS}, {4 * 1280 if n < 9 else (160 - 36) * 1280}")
        for cn in range(3):
            dma(cn)
        for cn in range(4):
            p.add(waitvm(last[cn]))
            p("s_waitcnt lgkmcnt(0)\ns_barrier")
            if cn == 1:
                dma(3)
            for f in range(5):
                for u in range(2):
                    d = A(((cn * 5 + f) * 2 + u) * 4, 4)
                    for hf in range(2):
                        if f < 4:
                            p(f"ds_read_b64_tr_b16 {d[2 * hf: 2 * hf + 2]}, {vR0} offset:{(2 * f + hf) * 20 * 256 + 8 * u}")
                        else:
                            p(f"ds_read_b64_tr_b16 {d[2 * hf: 2 * hf + 2]}, {vR1} offset:{hf * 80 * 256 + 8 * u}")
            step = 40960 if cn < 2 else -81920
            if cn < 3:
                p(f"v_add_u32 {vR0}, {step & 0xffffffff:#x}, {vR0}\nv_add_u32 {vR1}, {step & 0xffffffff:#x}, {vR1}")
        p("s_waitcnt lgkmcnt(0)\ns_barrier")

    def stage_w13(self, W13):
        p = self.p
        vD, vR0, vR1 = V(10, 3), V(13), V(14)
        sS, sM = sT[8], sT[9]
        PL, CH = 12304, 24608
        SR = Reg("s", 60, 4)
        for n in range(3):
            u = L + 64 * n
            p.add(self.calc(vR0, div(u, 12)))
            q = w(vR0)
            p.add(self.calc(vD[n], q * 3072 + ((u - q * 12) << 4)))
        g, r, cq = L >> 4, (L >> 2) & 3, L & 3
        p(f"s_mul_i32 {sM}, {sWave}, 48")
        p.add(self.calc(vR1, ((g << 3) + r) * 192 + sM))
        p.add(self.calc(vR0, w(vR1) + (cq << 3)))
        p.add(self.calc(vR1, w(vR1) + 32 + ((cq & 1) << 3) + (cq >> 1) * PL))
        p(f"""s_cmp_lt_u32 {sWave}, 2
              s_cselect_b64 {SR[0:2]}, {W1_[0:2]}, {W3_[0:2]}
              s_mov_b32 {SR[2]}, 1966080
              s_mov_b32 {SR[3]}, 0x20000
              s_and_b32 {sM}, {sWave}, 1
              s_mul_i32 {sS}, {sM}, {32 * 3072}
              s_mul_i32 {sT[10]}, {sMem}, 192
              s_add_u32 {sS}, {sS}, {sT[10]}
              s_mul_i32 {sM}, {sM}, 6144
              s_lshr_b32 {sT[10]}, {sWave}, 1
              s_mul_i32 {sT[10]}, {sT[10]}, {PL}
              s_add_u32 {sM}, {sM}, {sT[10]}""")
        last = {}
        NS = 4
        def dma(cn):
            for n in range(6):
                p(f"s_add_u32 m0, {sM}, {(cn % NS) * CH + n * 1024}")
                last[cn] = p(f"buffer_load_dwordx4 {vD[n % 3]}, {SR}, {sS} offen lds")
                if n % 3 == 2:
                    p(f"s_add_u32 {sS}, {sS}, {16 * 3072 if n == 2 else 48 * 3072}")
        for cn in range(NS - 1):
            dma(cn)
        for cn in range(10):
            p.add(waitvm(last[cn]))
            p("s_waitcnt lgkmcnt(0)\ns_barrier")
            if cn + NS - 1 < 10:
                dma(cn + NS - 1)
            for s in range(2):
                for T in range(3):
                    d = W13[2 * cn + s][T]
                    for hf in range(2):
                        off = (32 * s + 4 * hf) * 192 + (PL if T == 1 else 0)
                        p(f"ds_read_b64_tr_b16 {d[2 * hf: 2 * hf + 2]}, {vR1 if T == 2 else vR0} offset:{off}")
            step = CH if cn % NS < NS - 1 else -(NS - 1) * CH
            p(f"v_add_u32 {vR0}, {step & 0xffffffff:#x}, {vR0}\nv_add_u32 {vR1}, {step & 0xffffffff:#x}, {vR1}")
        p("s_waitcnt lgkmcnt(0)\ns_barrier")

    def stage_w2(self, W2, sCt):
        p = self.p
        vD, vR = V(10, 5), V(15)
        sS, sM = sT[8], sT[9]
        NS = 6
        for n in range(5):
            u = L + 64 * n
            p.add(self.calc(vR, div(u, 10)))
            q = w(vR)
            row = (q & 19) | ((q & 4) << 1) | ((q & 8) >> 1)
            p.add(self.calc(vD[n], row * 1280 + ((u - q * 10) << 4)))
        g, r, cq = L >> 4, (L >> 2) & 3, L & 3
        p(f"""s_mul_i32 {sM}, {sWave}, {NS * 5120}
              s_mul_i32 {sS}, {sWave}, {384 * 1280}
              s_mul_i32 {sT[10]}, {sCt}, 160
              s_add_u32 {sS}, {sS}, {sT[10]}""")
        p.add(self.calc(vR, (((g >> 1) << 4) + ((g & 1) << 2) + r) * 160 + (cq << 3) + sM))
        last, rds = {}, {}
        def dma(cn):
            for n in range(5):
                p(f"s_add_u32 m0, {sM}, {(cn % NS) * 5120 + n * 1024}")
                last[cn] = p(f"buffer_load_dwordx4 {vD[n]}, {W2_}, {sS} offen lds")
            p(f"s_add_u32 {sS}, {sS}, {32 * 1280}")
        for cn in range(NS):
            dma(cn)
        for cn in range(12):
            p.add(waitvm(last[cn]))
            for ct in range(5):
                for hf in range(2):
                    rds[cn] = p(f"ds_read_b64_tr_b16 {W2[cn][ct][2 * hf: 2 * hf + 2]}, {vR} offset:{(cn % NS) * 5120 + hf * 1280 + 32 * ct}")
            if cn >= 1 and cn - 1 + NS < 12:
                p.add(waitlg(rds[cn - 1]))
                dma(cn - 1 + NS)
        p("s_waitcnt lgkmcnt(0)\ns_barrier")

    def phaseB(self):
        p = self.p
        sCg, sTg, sNt, sU, sTile = sT[4], sT[5], sT[6], sT[7], sT[11]
        self.mapping(256, "B")
        p(f"""s_cmp_eq_u32 {sMem}, 15
              s_cbranch_scc1 LendB
              s_mul_i32 {sTg}, {sMem}, 52
              s_lshr_b32 {sTg}, {sTg}, 8
              s_mul_i32 {sU}, {sTg}, 5
              s_sub_u32 {sCg}, {sMem}, {sU}""")
        self.stage_wo(sCg)
        p.add(self.stamp(4))
        v16, v8, vF, vFA, vXA, vOW, vSA = V(10), V(11), V(12), V(13), V(14), V(15), V(16)
        vKA = V(18, 16)
        EPS = V(34, 4)
        XR = V(38, 12)
        PQr = [A(160 + 20 * i, 20) for i in range(3)]
        RAW = V(128, 128)
        p.add(self.calc(v16, L << 4))
        p.add(self.calc(v8, L << 3))
        p.add(self.calc(vFA, (L & 3) << 7))
        p(f"""s_lshl_b32 {sU}, {sCl}, 2
              s_add_u32 {sU}, {sU}, {sWave}
              s_lshl_b32 {sU}, {sU}, 9
              s_add_u32 {sT[12]}, {sU}, {FPQ}""")
        ld, chk = self.poll(vF, vFA, WS_, sT[12], 1)
        p.add(ld)
        p(f"""s_lshl_b32 {sTile}, {sCl}, 3
              s_add_u32 {sTile}, {sTile}, {sTg}
              s_lshl_b32 {sU}, {sCg}, 8
              s_lshl_b32 {sT[13]}, {sWave}, 6
              s_add_u32 {sU}, {sU}, {sT[13]}""")
        p.add(self.calc(vXA, T16 * 1280 + (G4 << 4) + sU))
        p(f"s_mul_i32 {sU}, {sTile}, {16 * 1280}")
        for i in range(3):
            p(f"buffer_load_dwordx4 {XR[4 * i: 4 * i + 4]}, {vXA}, {X_}, {sU} offen")
            p(f"s_add_u32 {sU}, {sU}, {48 * 1280}")
        for jj in range(4):
            for q in range(2):
                ok = G4.ge(jj) if q == 0 else G4.lt(jj + 1)
                dq = G4 + (4 * q - jj)
                p.add(self.calc(vKA[2 * jj + q], sel(ok, (dq << 8) + (T16 << 4) + jj * 1792, OOB)))
                r0 = 2 * (jj & 1)
                rowB = sel((T16 & 3).eq(r0), (T16 >> 2) << 4, sel((T16 & 3).eq(r0 + 1), 64, OOB))
                p.add(self.calc(vKA[8 + 2 * jj + q], sel(ok, (dq & 7) * 80 + rowB + (jj * 1792 + 1280), OOB)))
        p(f"v_mov_b32 {EPS[0]}, 0\nv_mov_b32 {EPS[1]}, {f32(1e-6)}\nv_mov_b32 {EPS[2]}, 0\nv_mov_b32 {EPS[3]}, {f32(1e-6)}")
        p(f"s_mul_i32 {sU}, {sWave}, 5120")
        p.add(self.calc(vOW, (L << 4) + sU))
        p.add(self.calc(vSA, (T16 << 3) + ((L >> 5) << 2)))
        p.add(chk)
        p(f"""s_lshl_b32 {sU}, {sTile}, 2
              s_add_u32 {sU}, {sU}, {sWave}
              s_mul_i32 {sU}, {sU}, 5120
              s_add_u32 {sU}, {sU}, {PQ}""")
        for i in range(3):
            if i == 2:
                p(f"s_cmp_eq_u32 {sTg}, 2\ns_cselect_b32 {sU}, {OOB}, {sU}")
            for hn in range(2):
                o = 2560 * hn
                p(f"""buffer_load_dwordx4 {PQr[i][10 * hn: 10 * hn + 4]}, {v16}, {WS_}, {sU} offen sc1
                      buffer_load_dwordx4 {PQr[i][10 * hn + 4: 10 * hn + 8]}, {v16}, {WS_}, {sU} offen offset:1024 sc1
                      buffer_load_dwordx2 {PQr[i][10 * hn + 8: 10 * hn + 10]}, {v8}, {WS_}, {sU} offen offset:2048 sc1
                      s_add_u32 {sU}, {sU}, {2560 if hn == 0 else 3 * 8 * 2560 - 2560}""")
        p.add(self.calc(vFA, (L & 31) << 7))
        p(f"""s_and_b32 {sU}, s2, 7
              s_lshl_b32 {sU}, {sU}, 14
              s_lshl_b32 {sT[12]}, {sWave}, 12
              s_add_u32 {sT[12]}, {sT[12]}, {sU}
              s_add_u32 {sT[12]}, {sT[12]}, {FKV}""")
        ld, chk = self.poll(vF, vFA, WS_, sT[12], 1)
        p.add(self.stamp(5))
        p.add(ld); p.add(chk)
        p.add(self.stamp(6))
        p(f"""s_mul_i32 {sU}, {sWave}, {8 * 1792}
              s_add_u32 {sU}, {sU}, {KVO}""")
        for hh in range(8):
            jj = hh & 3
            if hh == 4:
                p(f"s_add_u32 {sU}, {sU}, {4 * 1792}")
            for k in range(4):
                ad = vKA[8 * (k >> 1) + 2 * jj + (k & 1)]
                p(f"buffer_load_dwordx4 {RAW[16 * hh + 4 * k: 16 * hh + 4 * k + 4]}, {ad}, {WS_}, {sU} offen sc1")
        FA = [RAW[16 * hh: 16 * hh + 4] for hh in range(8)]
        FB = [RAW[16 * hh + 4: 16 * hh + 8] for hh in range(8)]
        for hh in range(8):
            for j in range(8):
                p(f"v_cvt_pk_bf16_f32 {RAW[16 * hh + j]}, {RAW[16 * hh + 2 * j]}, {RAW[16 * hh + 2 * j + 1]}")
        p.add(self.stamp(7))
        sHO, sSO, sFO = sT[12], sT[13], sT[14]
        p(f"""s_mul_i32 {sHO}, {sTile}, 20
              s_lshl_b32 {sU}, {sCg}, 2
              s_add_u32 {sHO}, {sHO}, {sU}
              s_add_u32 {sHO}, {sHO}, {sWave}
              s_lshl_b32 {sHO}, {sHO}, 10
              s_add_u32 {sHO}, {sHO}, {HB}
              s_lshl_b32 {sSO}, {sTile}, 7
              s_add_u32 {sSO}, {sSO}, {HST}
              s_lshl_b32 {sFO}, {sCl}, 4
              s_add_u32 {sFO}, {sFO}, {sMem}
              s_lshl_b32 {sFO}, {sFO}, 2
              s_add_u32 {sFO}, {sFO}, {sWave}
              s_lshl_b32 {sFO}, {sFO}, 7
              s_add_u32 {sFO}, {sFO}, {FH}""")
        p.add(self.calc(vFA, sel(L.eq(0), 0, OOB)))
        Dn = V(50, 48)
        OF = V(98, 20)
        acc = V(118, 8)
        OR_ = [RAW[16 * (j >> 1) + 8 + 4 * (j & 1): 16 * (j >> 1) + 12 + 4 * (j & 1)] for j in range(16)]
        for i in range(3):
            if i == 2:
                p(f"s_cmp_eq_u32 {sTg}, 2\ns_cbranch_scc1 LendB0")
            ob = (i & 1) * 20480
            win = lambda hh: PQr[i][10 * (hh >> 2) + 2 * (hh & 3): 10 * (hh >> 2) + 2 * (hh & 3) + 4]
            for a in range(4):
                d = Dn[12 * a: 12 * a + 12]
                p.add(mfma(d[8:12], FB[2 * a], win(2 * a), EPS))
                p.add(mfma(d[8:12], FB[2 * a + 1], win(2 * a + 1), d[8:12]))
                p.add(mfma(d[0:4], FA[2 * a], win(2 * a), "0"))
                p.add(mfma(d[4:8], FA[2 * a + 1], win(2 * a + 1), "0"))
            for j in range(4):
                p(f"v_lshlrev_b32 {acc[(j >> 1) * 4 + (j & 1) * 2]}, 16, {XR[4 * i + j]}")
                p(f"v_and_b32 {acc[(j >> 1) * 4 + (j & 1) * 2 + 1]}, 0xffff0000, {XR[4 * i + j]}")
            for a in range(4):
                d = Dn[12 * a: 12 * a + 12]
                p(f"v_rcp_f32 {d[9]}, {d[9]}\nv_rcp_f32 {d[11]}, {d[11]}")
                for e in range(2):
                    for j in range(4):
                        p(f"v_mul_f32 {d[4 * e + j]}, {d[9 + 2 * e]}, {d[4 * e + j]}")
                    p(f"v_mul_f32 {d[8 + 2 * e]}, {d[9 + 2 * e]}, {d[8 + 2 * e]}")
                for j in range(4):
                    p(f"v_cvt_pk_bf16_f32 {OF[4 * a + j]}, {d[2 * j]}, {d[2 * j + 1]}")
                p(f"v_cvt_pk_bf16_f32 {OF[16 + a]}, {d[8]}, {d[10]}")
                p(f"ds_write_b128 {vOW}, {OF[4 * a: 4 * a + 4]} offset:{ob + 1024 * a}")
            p(f"ds_write_b128 {vOW}, {OF[16:20]} offset:{ob + 4096}")
            p("s_waitcnt lgkmcnt(0)\ns_barrier")
            rd = [I(f"ds_read_b128 {OR_[ks % 16]}, {v16} offset:{ob + 1024 * ks}") for ks in range(20)]
            p.add(rd[:6])
            mf = []
            for ks in range(20):
                for u in range(2):
                    mf.append(mfma(acc[4 * u: 4 * u + 4], A((ks * 2 + u) * 4, 4), OR_[ks % 16], acc[4 * u: 4 * u + 4]))
            p.add(weave(mf, [[(x, 2 * k) for k, x in enumerate(rd[6:])]]))
            H = OF[0:4]
            for j in range(4):
                p(f"v_cvt_pk_bf16_f32 {H[j]}, {acc[2 * j]}, {acc[2 * j + 1]}")
            p(f"buffer_store_dwordx4 {H}, {v16}, {WS_}, {sHO} offen sc1")
            s1, s2 = Dn[0], Dn[1]
            p(f"v_add_f32 {s1}, {acc[0]}, {acc[1]}\nv_mul_f32 {s2}, {acc[0]}, {acc[0]}\nv_fmac_f32 {s2}, {acc[1]}, {acc[1]}")
            for j in range(2, 8):
                p(f"v_add_f32 {s1}, {s1}, {acc[j]}\nv_fmac_f32 {s2}, {acc[j]}, {acc[j]}")
            p(f"""v_permlane32_swap_b32 {s1}, {s2}
                  v_add_f32 {s1}, {s1}, {s2}
                  v_mov_b32 {s2}, {s1}
                  v_permlane16_swap_b32 {s1}, {s2}
                  v_add_f32 {s1}, {s1}, {s2}
                  s_mov_b32 exec_lo, 0xffff
                  s_mov_b32 exec_hi, 0xffff
                  buffer_atomic_add_f32 {s1}, {vSA}, {WS_}, {sSO} offen
                  s_mov_b64 exec, -1
                  v_mov_b32 {vF}, {i + 1}
                  s_add_u32 {sHO}, {sHO}, {3 * 20480}
                  s_add_u32 {sSO}, {sSO}, {3 * 128}
                  s_waitcnt vmcnt(0)
                  buffer_store_dword {vF}, {vFA}, {WS_}, {sFO} offen sc1""")
            if i == 0:
                p.add(self.stamp(8))
        p("LendB0:\ns_barrier\nLendB:")
        p("s_waitcnt vmcnt(0) lgkmcnt(0)")

    def phaseC(self):
        p = self.p
        self.mapping(self.c.mapC, "C")
        W13 = [[A((ks * 3 + T) * 4, 4) for T in range(3)] for ks in range(20)]
        self.stage_w13(W13)
        p.add(self.stamp(9))
        v16, vF, vFA, vSA, vEW, vEW2, vER, vGA, vOne, vFO = [V(10 + i) for i in range(10)]
        ones = V(20, 4)
        CS = V(24, 12)
        acc = [V(36, 12), V(48, 12)]
        HF = [V(60 + 4 * i, 4) for i in range(8)]
        ST = [V(92, 2), V(94, 2)]
        mean, ve, ke = V(96), V(97), V(98)
        Tm = V(100, 12)
        HO = V(112, 4)
        EX = V(116, 4)
        HR, EXB = 0, 61440
        sU, sHS, sMH, sFS, sSS, sGO, sFO = sT[4:11]
        for i in range(4):
            p(f"v_mov_b32 {ones[i]}, 0x3f803f80")
        for ks in range(20):
            for T in range(3):
                p.add(mfma(CS[4 * T: 4 * T + 4], W13[ks][T], ones, "0" if ks == 0 else CS[4 * T: 4 * T + 4]))
        p.add(self.calc(v16, L << 4))
        p.add(self.calc(vFA, vmin(L, 19) << 7))
        p.add(self.calc(vSA, T16 << 3))
        p(f"s_mul_i32 {sU}, {sWave}, 48")
        p.add(self.calc(vEW2, T16 * 208 + sU + EXB))
        p.add(self.calc(vEW, w(vEW2) + (G4 << 3)))
        p.add(self.calc(vEW2, w(vEW2) + 32 + ((G4 & 1) << 3) + ((G4 >> 1) << 2)))
        p(f"s_min_u32 {sU}, {sWave}, 2\ns_lshl_b32 {sU}, {sU}, 6")
        p.add(self.calc(vER, T16 * 208 + (G4 << 4) + sU + EXB))
        p(f"s_cmp_lt_u32 {sWave}, 3\ns_cselect_b32 {sU}, 0, {OOB}")
        p.add(self.calc(vGA, (L << 4) + sU))
        p.add(self.calc(vFO, sel(L.eq(0), 0, OOB)))
        p(f"""s_mul_i32 {sHS}, {sCl}, {8 * 20480}
              s_mul_i32 {sMH}, {sWave}, 5120
              s_add_u32 {sHS}, {sHS}, {sMH}
              s_add_u32 {sHS}, {sHS}, {HB}
              s_lshl_b32 {sFS}, {sCl}, 13
              s_add_u32 {sFS}, {sFS}, {FH}
              s_lshl_b32 {sSS}, {sCl}, 10
              s_add_u32 {sSS}, {sSS}, {HST}
              s_mul_i32 {sGO}, {sCl}, {8 * 48}
              s_mul_i32 {sU}, {sMem}, 3
              s_add_u32 {sGO}, {sGO}, {sU}
              s_add_u32 {sGO}, {sGO}, {sWave}
              s_lshl_b32 {sGO}, {sGO}, 10
              s_add_u32 {sGO}, {sGO}, {HH}
              s_lshl_b32 {sFO}, {sCl}, 4
              s_add_u32 {sFO}, {sFO}, {sMem}
              s_lshl_b32 {sFO}, {sFO}, 2
              s_add_u32 {sFO}, {sFO}, {sWave}
              s_lshl_b32 {sFO}, {sFO}, 7
              s_add_u32 {sFO}, {sFO}, {FHH}""")
        p(f"v_permlane32_swap_b32 {CS[8]}, {CS[10]}\nv_permlane32_swap_b32 {CS[9]}, {CS[11]}")
        sP = [sT[11], sT[12], sT[13]]
        for tg in range(3):
            p(f"s_add_u32 {sP[tg]}, {sFS}, {tg * 20 * 128}")
        polls = {i: self.poll(vF, vFA, WS_, sP[i % 3], i // 3 + 1) for i in range(8)}
        last = {}
        def dma(i):
            o = []
            for n in range(5):
                o.append(I(f"s_add_u32 m0, {sMH}, {HR + (i % 3) * 20480 + n * 1024}"))
                o.append(I(f"buffer_load_dwordx4 {v16}, {WS_}, {sHS} offen sc1 lds"))
                o.append(I(f"s_add_u32 {sHS}, {sHS}, {1024 if n < 4 else 20480 - 4096}"))
            last[i] = o[-2]
            return o
        stld = lambda i: I(f"buffer_load_dwordx2 {ST[i & 1]}, {vSA}, {WS_}, {sSS} offen offset:{128 * i} sc1")
        rd = lambda i, ks: I(f"ds_read_b128 {HF[(20 * i + ks) % 8]}, {v16} offset:{HR + (i % 3) * 20480 + 1024 * ks}")
        def epi(i):
            a, s = acc[i & 1], ST[i & 1]
            o = [I(f"v_mul_f32 {mean}, {f32(-1.0 / 640)}, {s[0]}"),
                 I(f"v_mov_b32 {ve}, {f32(1e-5)}"),
                 I(f"v_fmac_f32 {ve}, {f32(1.0 / 640)}, {s[1]}"),
                 I(f"v_fma_f32 {ve}, -{mean}, {mean}, {ve}"),
                 I(f"v_max_f32 {ve}, {f32(1e-5)}, {ve}"),
                 I(f"v_rsq_f32 {ke}, {ve}"),
                 I(f"v_permlane32_swap_b32 {a[8]}, {a[10]}"),
                 I(f"v_permlane32_swap_b32 {a[9]}, {a[11]}"),
                 I(f"v_mul_f32 {ke}, {f32(-LOG2E)}, {ke}")]
            pairs = [(0, 4), (1, 5), (2, 6), (3, 7), (8, 10), (9, 11)]
            for j in range(12):
                o.append(I(f"v_fmac_f32 {a[j]}, {mean}, {CS[j]}"))
            for k, (gi, ui) in enumerate(pairs):
                o.append(I(f"v_mul_f32 {Tm[k]}, {ke}, {a[gi]}"))
            for k, (gi, ui) in enumerate(pairs):
                o.append(I(f"v_exp_f32 {Tm[k]}, {Tm[k]}"))
                o.append(I(f"v_mul_f32 {a[gi]}, {a[gi]}, {a[ui]}"))
            for k in range(6):
                o.append(I(f"v_fma_f32 {Tm[k]}, {Tm[k]}, {ve}, {ve}"))
            for k in range(6):
                o.append(I(f"v_rcp_f32 {Tm[k]}, {Tm[k]}"))
            for k, (gi, ui) in enumerate(pairs):
                o.append(I(f"v_mul_f32 {Tm[k]}, {Tm[k]}, {a[gi]}"))
            for k in range(3):
                o.append(I(f"v_cvt_pk_bf16_f32 {HO[k]}, {Tm[2 * k]}, {Tm[2 * k + 1]}"))
            o.append(I(f"ds_write_b64 {vEW}, {HO[0:2]} offset:{(i & 1) * 3328}"))
            o.append(I(f"ds_write_b32 {vEW2}, {HO[2]} offset:{(i & 1) * 3328}"))
            return o
        stores = {}
        def pub(i):
            stores[i] = I(f"buffer_store_dwordx4 {EX}, {vGA}, {WS_}, {sGO} offen sc1")
            return [I(f"ds_read_b128 {EX}, {vER} offset:{(i & 1) * 3328}")], [stores[i], I(f"s_add_u32 {sGO}, {sGO}, {48 * 1024}")]
        flag = lambda i: [I(f"v_mov_b32 {vOne}, {i + 1}"), waitvm(stores[i]),
                          I(f"buffer_store_dword {vOne}, {vFO}, {WS_}, {sFO} offen sc1")]
        for i in range(3):
            p.add(polls[i][0]); p.add(polls[i][1])
            if i == 0:
                p.add(self.stamp(10))
            p.add(dma(i))
        p.add(polls[3][0])
        p.add(waitvm(last[0]))
        p("s_barrier")
        p.add(self.stamp(11))
        p.add([rd(0, ks) for ks in range(5)])
        for i in range(8):
            mf = []
            for ks in range(20):
                for T in range(3):
                    d = acc[i & 1][4 * T: 4 * T + 4]
                    mf.append(mfma(d, W13[ks][T], HF[(20 * i + ks) % 8], "0" if ks == 0 else d))
            r1 = [(rd(i, ks), max(0, 3 * (ks - 7))) for ks in range(5, 20)]
            side = [(stld(i), 2)]
            if i >= 2:
                side += [(x, 30) for x in flag(i - 2)]
            e = [(x, 3) for x in epi(i - 1)] if i else []
            p.add(weave(mf[:44], [r1, side, e]))
            p("s_waitcnt lgkmcnt(0)")
            if i < 7:
                p.add(waitvm(last[i + 1]))
            p("s_barrier")
            r2 = [rd(i + 1, ks) for ks in range(5)] if i < 7 else []
            r2 = [(x, max(0, 3 * (k + 13) - 44)) for k, x in enumerate(r2)]
            pb = pub(i - 1) if i else ([], [])
            side = pb[0]
            if i + 3 < 8:
                side = side + polls[i + 3][1] + dma(i + 3)
            tail = [(x, 6) for x in pb[1]]
            if i + 4 < 8:
                side = side + [polls[i + 4][0]]
            p.add(weave(mf[44:], [r2, tail, side]))
        p.add(self.stamp(12))
        p.add(epi(7))
        p.add(flag(6))
        p("s_waitcnt lgkmcnt(0)\ns_barrier")
        pb = pub(7)
        p.add(pb[0]); p.add(pb[1]); p.add(flag(7))
        p("s_waitcnt lgkmcnt(0)\ns_barrier")

    def phaseD(self):
        p = self.p
        self.mapping(256, "D")
        sCt, sPar, sU, sHS, sFS, sRO, sOO = sT[4], sT[5], sT[6], sT[7], sT[11], sT[12], sT[13]
        p(f"s_and_b32 {sCt}, {sMem}, 7\ns_lshr_b32 {sPar}, {sMem}, 3")
        W2 = [[A((ks * 5 + ct) * 4, 4) for ct in range(5)] for ks in range(12)]
        self.stage_w2(W2, sCt)
        p.add(self.stamp(13))
        v16, vF, vFA, vPW, vPR, vRA, vOA, vWant = [V(10 + i) for i in range(8)]
        HF = [V(20 + 48 * s, 48) for s in range(2)]
        acc = [V(116, 20), V(136, 20)]
        RES = V(156, 16)
        PR = V(172, 32)
        O = V(204, 4)
        RS, PB = 336, 5376
        p.add(self.calc(v16, L << 4))
        p.add(self.calc(vFA, (L & 15) << 7))
        p(f"s_mul_i32 {sU}, {sWave}, {PB}")
        p.add(self.calc(vPW, T16 * RS + (G4 << 4) + sU))
        p.add(self.calc(vF, div(L, 10)))
        p.add(self.calc(vWant, L - w(vF) * 10))
        p(f"s_lshl_b32 {sU}, {sWave}, 2")
        p.add(self.calc(vF, vmin(w(vF), 3) + sU))
        p.add(self.calc(vPR, w(vF) * RS + (w(vWant) << 5)))
        p(f"s_mul_i32 {sU}, {sCt}, 10")
        p.add(self.calc(vWant, w(vWant) + sU))
        p.add(self.calc(vRA, sel(L.lt(40), (w(vWant) << 8) + (w(vF) << 4), OOB)))
        p.add(self.calc(vOA, sel(L.lt(40), w(vF) * 1280 + (w(vWant) << 4), OOB)))
        p(f"""s_lshl_b32 {sU}, {sCl}, 3
              s_add_u32 {sU}, {sU}, {sPar}
              s_mul_i32 {sRO}, {sU}, 20480
              s_mov_b32 {sOO}, {sRO}
              s_add_u32 {sRO}, {sRO}, {HB}
              s_mul_i32 {sHS}, {sU}, 48
              s_mul_i32 {sU}, {sWave}, 12
              s_add_u32 {sHS}, {sHS}, {sU}
              s_lshl_b32 {sHS}, {sHS}, 10
              s_add_u32 {sHS}, {sHS}, {HH}
              s_lshl_b32 {sFS}, {sCl}, 2
              s_add_u32 {sFS}, {sFS}, {sWave}
              s_lshl_b32 {sFS}, {sFS}, 11
              s_add_u32 {sFS}, {sFS}, {FHH}""")
        sW = [sT[14], sT[15], sT[16], sT[17]]
        for i in range(4):
            p(f"s_add_u32 {sW[i]}, {sPar}, {2 * i + 1}")
        polls = {i: self.poll(vF, vFA, WS_, sFS, sW[i]) for i in range(4)}
        def loads(i):
            o = []
            for ks in range(12):
                o.append(I(f"buffer_load_dwordx4 {HF[i & 1][4 * ks: 4 * ks + 4]}, {v16}, {WS_}, {sHS} offen offset:{1024 * (ks & 3)} sc1"))
                if ks & 3 == 3:
                    o.append(I(f"s_add_u32 {sHS}, {sHS}, {4096 if ks < 11 else 96 * 1024 - 8192}"))
            o.append(I(f"buffer_load_dwordx4 {RES[4 * i: 4 * i + 4]}, {vRA}, {WS_}, {sRO} offen sc1"))
            o.append(I(f"s_add_u32 {sRO}, {sRO}, {2 * 20480}"))
            return o
        wr = lambda i: [I(f"ds_write_b128 {vPW}, {acc[i & 1][4 * ct: 4 * ct + 4]} offset:{(i & 1) * 4 * PB + 64 * ct}") for ct in range(5)]
        def fin(i):
            o = []
            for s in range(4):
                for h in range(2):
                    o.append(I(f"ds_read_b128 {PR[8 * s + 4 * h: 8 * s + 4 * h + 4]}, {vPR} offset:{(i & 1) * 4 * PB + s * PB + 16 * h}"))
            for j in range(4):
                o.append(I(f"v_lshlrev_b32 {O[j]}, 16, {RES[4 * i + j]}"))
                o.append(I(f"v_and_b32 {RES[4 * i + j]}, 0xffff0000, {RES[4 * i + j]}"))
            for j in range(8):
                o.append(I(f"v_add_f32 {PR[j]}, {PR[j]}, {PR[8 + j]}"))
            for j in range(8):
                o.append(I(f"v_add_f32 {PR[16 + j]}, {PR[16 + j]}, {PR[24 + j]}"))
            for j in range(8):
                o.append(I(f"v_add_f32 {PR[j]}, {PR[j]}, {PR[16 + j]}"))
            for j in range(8):
                o.append(I(f"v_add_f32 {PR[j]}, {PR[j]}, {O[j >> 1] if j % 2 == 0 else RES[4 * i + (j >> 1)]}"))
            for j in range(4):
                o.append(I(f"v_cvt_pk_bf16_f32 {O[j]}, {PR[2 * j]}, {PR[2 * j + 1]}"))
            o.append(I(f"buffer_store_dwordx4 {O}, {vOA}, {OUT_}, {sOO} offen"))
            o.append(I(f"s_add_u32 {sOO}, {sOO}, {2 * 20480}"))
            return o
        p.add(polls[0][0]); p.add(polls[0][1]); p.add(loads(0))
        p.add(polls[1][0])
        for i in range(4):
            mf = []
            for ks in range(12):
                for ct in range(5):
                    d = acc[i & 1][4 * ct: 4 * ct + 4]
                    mf.append(mfma(d, W2[ks][ct], HF[i & 1][4 * ks: 4 * ks + 4], "0" if ks == 0 else d))
            nxt = (polls[i + 1][1] + loads(i + 1) + ([polls[i + 2][0]] if i + 2 < 4 else [])) if i < 3 else []
            if i == 0:
                p.add(weave(mf, [nxt]))
            else:
                p.add(weave(mf[:24], [[(x, 3) for x in wr(i - 1)], nxt]))
                p("s_waitcnt lgkmcnt(0)\ns_barrier")
                p.add(weave(mf[24:], [fin(i - 1)]))
        p.add(self.stamp(14))
        p.add(wr(3))
        p("s_waitcnt lgkmcnt(0)\ns_barrier")
        p.add(fin(3))

    def dump_stamps(self):
        p = self.p
        p("s_waitcnt vmcnt(0)")
        p.add(self.stamp(15))
        p("s_waitcnt lgkmcnt(0)")
        for i in range(16):
            p(f"v_mov_b32 v{10 + i}, s{64 + 2 * i}")
        p(f"""s_lshl_b32 {sT[0]}, s2, 2
              s_add_u32 {sT[0]}, {sT[0]}, {sWave}
              s_lshl_b32 {sT[0]}, {sT[0]}, 6
              s_add_u32 {sT[0]}, {sT[0]}, {DIAG}""")
        p.add(self.calc(V(26), sel(L.eq(0), 0, OOB)))
        for i in range(4):
            p(f"buffer_store_dwordx4 v[{10 + 4 * i}:{13 + 4 * i}], v26, {WS_}, {sT[0]} offen offset:{16 * i}")
        if self.c.probe >= 0:
            i, j = self.c.probe >> 4, self.c.probe & 15
            p(f"""s_cmp_lg_u32 s2, {self.c.probewg}
                  s_cbranch_scc1 Lexit
                  s_sub_u32 {sT[0]}, s{64 + 2 * j}, s{64 + 2 * i}
                  s_min_u32 {sT[0]}, {sT[0]}, 10000
                  s_mul_i32 {sT[0]}, {sT[0]}, 20
                  s_add_u32 {sT[0]}, {sT[0]}, s94
                  Lprobe:
                  s_memrealtime s[96:97]
                  s_waitcnt lgkmcnt(0)
                  s_sub_u32 {sT[1]}, s96, {sT[0]}
                  s_cmp_lt_i32 {sT[1]}, 0
                  s_cbranch_scc1 Lprobe""")

    def build(self):
        p = self.p
        self.prologue()
        p(f"""s_cmp_ge_u32 {sMem}, 12
              s_cbranch_scc1 Lhelper
              s_cmp_ge_u32 {sMem}, 8
              s_cbranch_scc1 Lq""")
        self.gemmA("kv")
        p("s_branch Ljoin\nLq:")
        self.gemmA("q")
        p("s_branch Ljoin\nLhelper:")
        self.helper()
        p("Ljoin:\n.RESET")
        self.phaseB()
        self.phaseC()
        self.phaseD()
        if self.c.stamps:
            self.dump_stamps()
        body = p.finish()
        head = open(f"cdna_kernels/{NAME}.s.ref").read().split("; Override launch")[0]
        return f"""{head}; @launch grid=(256,1,1) block=(256,1,1) lds=163840
.amdgcn_target "amdgcn-amd-amdhsa--gfx950"
.text
.globl {NAME}_kernel
.p2align 8
.type {NAME}_kernel,@function
{NAME}_kernel:
{body}
Lexit:
    s_endpgm
""" + "\n".join(self.slow) + f"""
Lcodeend:
.section .rodata,"a"
.p2align 6
.amdhsa_kernel {NAME}_kernel
  .amdhsa_next_free_vgpr 512
  .amdhsa_next_free_sgpr 102
  .amdhsa_accum_offset 256
  .amdhsa_group_segment_fixed_size 0
  .amdhsa_kernarg_size 80
  .amdhsa_user_sgpr_count 2
  .amdhsa_user_sgpr_kernarg_segment_ptr 1
  .amdhsa_system_sgpr_workgroup_id_x 1
.end_amdhsa_kernel
"""


def make(**kw):
    c = Cfg()
    for k, v in kw.items():
        assert hasattr(c, k), k
        setattr(c, k, v)
    return Gen(c).build()


if __name__ == "__main__":
    out = sys.argv[1] if len(sys.argv) > 1 else f"cdna_kernels/{NAME}.s"
    kw = {}
    for a in sys.argv[2:]:
        k, v = a.split("=")
        kw[k] = int(v)
    open(out, "w").write(make(**kw))
```

```python
import re

REG_RE = re.compile(r"^(-|abs\()?([vas])(?:(\d+)|\[(\d+):(\d+)\])\)?$")
TRANS = ("v_exp_f32", "v_log_f32", "v_rcp_f32", "v_rsq_f32", "v_sqrt_f32", "v_sin_f32", "v_cos_f32")


def regs_of(tok):
    tok = tok.strip()
    if tok in ("vcc", "exec", "m0", "scc"):
        return [tok]
    if tok == "vcc_lo":
        return ["vcc"]
    m = REG_RE.match(tok)
    if not m:
        return []
    k = m.group(2)
    if m.group(3) is not None:
        return [f"{k}{int(m.group(3))}"]
    return [f"{k}{i}" for i in range(int(m.group(4)), int(m.group(5)) + 1)]


def R(kind, base, n=1):
    return f"{kind}{base}" if n == 1 else f"{kind}[{base}:{base + n - 1}]"


class Reg:
    def __init__(self, kind, base, n=1):
        self.kind, self.base, self.n = kind, base, n

    def __getitem__(self, i):
        if isinstance(i, slice):
            a = i.start or 0
            b = self.n if i.stop is None else i.stop
            assert 0 <= a < b <= self.n, (a, b, self.n)
            return Reg(self.kind, self.base + a, b - a)
        assert 0 <= i < self.n, (i, self.n)
        return Reg(self.kind, self.base + i, 1)

    def __str__(self):
        return R(self.kind, self.base, self.n)
    __repr__ = __str__
    def __format__(self, spec):
        return str(self)


class Ins:
    __slots__ = ("text", "mn", "rd", "wr", "cls", "tok", "waits", "slots", "glued", "after", "lag")

    def __init__(self, text, tok=None):
        self.text = text
        self.tok = tok
        self.waits = None
        self.glued = False
        self.after = []
        self.lag = None
        parts = text.split(None, 1)
        mn = self.mn = parts[0]
        rest = parts[1] if len(parts) > 1 else ""
        ops = []
        for piece in re.split(r",(?![^\[]*\])", rest):
            piece = piece.strip()
            if piece:
                ops.append(piece.split()[0])
        rr = [regs_of(o) for o in ops]
        flat = lambda L: [x for y in L for x in y]
        self.slots = 1
        if mn.endswith(":") or mn.startswith("."):
            self.cls, self.rd, self.wr = "label", [], []
        elif mn.startswith("v_mfma"):
            self.cls, self.wr, self.rd = "mfma", rr[0], flat(rr[1:])
        elif mn.startswith("ds_read"):
            self.cls, self.wr, self.rd = "ds", rr[0], flat(rr[1:])
        elif mn.startswith("ds_write"):
            self.cls, self.wr, self.rd = "ds", [], flat(rr)
        elif mn.startswith("ds_bpermute") or mn.startswith("ds_swizzle"):
            self.cls, self.wr, self.rd = "ds", rr[0], flat(rr[1:])
        elif mn.startswith("buffer_load") or mn.startswith("global_load"):
            if re.search(r"\blds\b", rest):
                self.cls, self.wr, self.rd = "vm", [], flat(rr) + ["m0"]
            else:
                self.cls, self.wr, self.rd = "vm", rr[0], flat(rr[1:])
        elif mn.startswith("buffer_store") or mn.startswith("buffer_atomic") or mn.startswith("global_store"):
            self.cls, self.wr, self.rd = "vm", [], flat(rr)
        elif mn.startswith("v_"):
            self.cls = "valu"
            self.wr, self.rd = rr[0], flat(rr[1:])
            if mn.startswith(("v_fmac", "v_dot2c")) or "_dpp" in mn:
                self.rd = self.rd + rr[0]
            if mn.startswith("v_permlane") and "swap" in mn:
                self.wr = rr[0] + rr[1]
                self.rd = rr[0] + rr[1]
                self.slots = 2
            if mn.startswith(TRANS):
                self.slots = 2
            if mn.startswith(("v_add_co", "v_sub_co", "v_addc_co")):
                self.wr = rr[0] + rr[1]
                self.rd = flat(rr[2:])
        elif mn.startswith(("s_load", "s_memtime", "s_memrealtime")):
            self.cls, self.wr, self.rd = "smem", rr[0], flat(rr[1:])
        elif mn in ("s_waitcnt", "s_nop", "s_barrier", "s_sleep", "s_endpgm", "s_setprio", "WAITVM", "WAITLG"):
            self.cls, self.wr, self.rd = "sctl", [], []
        elif mn.startswith(("s_cbranch", "s_branch")):
            self.cls, self.wr, self.rd = "branch", [], []
        elif mn.startswith("s_cmp"):
            self.cls, self.wr, self.rd = "salu", [], flat(rr)
        elif mn.startswith("s_"):
            self.cls, self.wr, self.rd = "salu", rr[0], flat(rr[1:])
            if "saveexec" in mn:
                self.wr = self.wr + ["exec"]
        else:
            raise ValueError("unknown instruction: " + text)

        if self.cls == "vm":
            self.slots = 2

    @property
    def scalar(self):
        return self.cls in ("salu", "sctl", "smem")


class Tok:
    pass


def waitvm(*inss):
    i = Ins("WAITVM")
    i.waits = [x for x in inss if x is not None]
    return i


def waitlg(*inss):
    i = Ins("WAITLG")
    i.waits = [x for x in inss if x is not None]
    return i


def I(text):
    return Ins(text)


def glue(inss):
    for x in inss:
        if x.mn.startswith(("s_cselect", "s_cbranch_scc", "s_subb", "s_addc", "Lback")):
            x.glued = True
    return inss


class Pool(list):
    pass


def _dep(a, b):
    if a.cls in ("label", "branch", "sctl") or b.cls in ("label", "branch", "sctl"):
        return True
    if a.cls == b.cls and a.cls in ("vm", "ds", "salu"):
        return True
    aw, bw = set(a.wr), set(b.wr)
    return bool(aw & set(b.rd) or aw & bw or bw & set(a.rd))


def weave(mf, streams, vslots=2, keep=False):
    qs = [[e if isinstance(e, tuple) else (e, 0) for e in s] for s in streams]
    pool = [isinstance(s, Pool) for s in streams]
    todo = {id(e[0]): k for k, q in enumerate(qs) for e in q}
    todo.update({id(m): -1 for m in mf})
    out = []
    placed, now = {}, [0]
    ready = lambda ins: (not any(id(x) in todo for x in ins.after)
                         and (ins.lag is None or now[0] >= placed.get(id(ins.lag[0]), -999) + ins.lag[1]))

    def cands(k, g):
        q = qs[k]
        for j in range(min(len(q), 24 if pool[k] else 1)):
            ins, e = q[j]
            if e <= g and ready(ins) and not any(_dep(q[i][0], ins) for i in range(j)):
                yield j, ins

    def stalls(ins, gap):
        prev = gap[-1] if gap else None
        return prev is not None and Prog._need_states(prev, ins) > 0

    def pop(k, j, dst):
        n = 0
        ins = qs[k].pop(j)[0]
        placed[id(ins)] = now[0]
        del todo[id(ins)]
        dst.append(ins)
        while qs[k] and qs[k][0][0].glued:
            x = qs[k].pop(0)[0]
            del todo[id(x)]
            dst.append(x)
            n += x.cls != "label"
        return ins, n

    def force(x):
        while id(x) in todo:
            k = todo[id(x)]
            assert k >= 0, "circular order at " + x.text
            head = qs[k][0][0]
            for y in head.after:
                force(y)
            pop(k, 0, out)

    lastvm = -9
    for g, m in enumerate(mf):
        for x in m.after:
            force(x)
        del todo[id(m)]
        now[0] = g
        out.append(m)
        gap = []
        for k in range(len(qs)):
            hit = next(((j, i) for j, i in cands(k, g) if i.scalar), None)
            if hit:
                pop(k, hit[0], gap)
                break
        vfree = vslots - max(0, sum(x.cls != "label" for x in gap) - 1)
        while True:
            pick = None
            if vfree >= 2 and g - lastvm >= 2:
                for k in range(len(qs)):
                    hit = next(((j, i) for j, i in cands(k, g) if i.cls == "vm" and not stalls(i, gap)), None)
                    if hit:
                        pick, lastvm = (k, hit[0]), g
                        break
            for k in range(len(qs) if pick is None else 0):
                cs = [(j, i) for j, i in cands(k, g)
                      if (i.cls == "label" or i.slots <= vfree) and not stalls(i, gap)]
                if not cs:
                    continue
                big = [c for c in cs if c[1].slots == 2]
                pick = (k, (big or cs)[0][0])
                break
            if pick is None:
                break
            ins, n = pop(pick[0], pick[1], gap)
            vfree -= n + (ins.slots if ins.cls != "label" and ins.mn not in ("WAITVM", "WAITLG") else 0)
        out += gap
    if keep:
        return out, [[e[0] for e in q] for q in qs]
    for q in qs:
        while q:
            force(q[-1][0])
    return out


def after(x, *ys):
    x.after += [y for y in ys if y is not None]
    return x


def lagged(x, y, gaps):
    x.after.append(y)
    x.lag = (y, gaps)
    return x


def ordered(body, pairs):
    pos = {id(x): k for k, x in enumerate(body)}
    for x, y in pairs:
        x = x[0] if isinstance(x, tuple) else x
        y = y[0] if isinstance(y, tuple) else y
        assert pos.get(id(x), -1) < pos[id(y)], (x.text, y.text)


def mix(main, side, every):
    out, n, side = [], 0, list(side)
    for ins in main:
        out.append(ins)
        n += ins.slots
        if n >= every and side and ins.cls == "valu" and "vcc" not in ins.wr:
            out += side.pop(0)
            n = 0
    return out, side


def spread(inss, g0, g1):
    n = len(inss)
    return [(x, g0 + (g1 - g0) * i // max(n, 1)) for i, x in enumerate(inss)]


class Prog:
    def __init__(self):
        self.ins = []

    def __call__(self, text):
        last = None
        for line in text.strip().split("\n"):
            line = line.strip()
            if line:
                last = Ins(line)
                self.ins.append(last)
        return last

    def capture(self):
        self._saved, self.ins = self.ins, []

    def release(self):
        got, self.ins = self.ins, self._saved
        return got

    def add(self, x):
        if isinstance(x, Ins):
            self.ins.append(x)
        else:
            for y in x:
                self.add(y)

    def _insert_waits(self):
        out = []
        vm, lg = [], []
        def need(q, ins, explicit):
            touched = set(ins.rd) | set(ins.wr)
            idx = -1
            for j, p in enumerate(q):
                if (explicit is not None and any(p is e for e in explicit)) or (explicit is None and touched & set(p.wr)):
                    idx = j
            return idx
        def place(kind, q, idx, hoist):
            n = len(q) - 1 - idx
            at = len(out)
            if hoist:
                j = len(out) - 1
                cnt = 0
                steps = 0
                while j >= 0 and steps < 4 and out[j].cls in ("valu", "ds", "vm"):
                    if out[j] is q[idx]:
                        j = -1
                        break
                    if out[j].cls == ("vm" if kind == "vmcnt" else "ds"):
                        cnt += 1
                    j -= 1; steps += 1
                if j >= 0 and out[j].cls == "mfma":
                    at, n = j + 1, n - cnt
                elif j >= 1 and out[j].mn == "s_waitcnt" and out[j - 1].cls == "mfma":
                    at, n = j + 1, n - cnt
            lim = 63 if kind == "vmcnt" else 15
            n = min(n, lim)
            if at > 0 and out[at - 1].mn == "s_waitcnt":
                cur = dict(re.findall(r"(\w+)\((\d+)\)", out[at - 1].text))
                cur[kind] = str(min(int(cur.get(kind, 99)), n))
                out[at - 1] = Ins("s_waitcnt " + " ".join(f"{a}({b})" for a, b in sorted(cur.items(), reverse=True)))
            else:
                out.insert(at, Ins(f"s_waitcnt {kind}({n})"))
            del q[: idx + 1]
        for ins in self.ins:
            if ins.mn == "WAITVM":
                idx = need(vm, ins, ins.waits)
                if idx >= 0:
                    place("vmcnt", vm, idx, False)
                continue
            if ins.mn == "WAITLG":
                idx = need(lg, ins, ins.waits)
                if idx >= 0:
                    place("lgkmcnt", lg, idx, False)
                continue
            if ins.mn == ".RESET":
                vm.clear(); lg.clear()
                continue
            if ins.mn == ".FORGET":
                del vm[len(vm) - int(ins.text.split()[1]):]
                continue
            if ins.mn == "s_waitcnt":
                cur = dict(re.findall(r"(\w+)\((\d+)\)", ins.text))
                if "vmcnt" in cur:
                    del vm[: max(0, len(vm) - int(cur["vmcnt"]))]
                if "lgkmcnt" in cur:
                    del lg[: max(0, len(lg) - int(cur["lgkmcnt"]))]
                out.append(ins)
                continue
            hoist = ins.cls == "mfma"
            idx = need(vm, ins, None)
            if idx >= 0:
                place("vmcnt", vm, idx, hoist)
            idx = need(lg, ins, None)
            if idx >= 0:
                place("lgkmcnt", lg, idx, hoist)
            if ins.cls == "vm":
                if len(vm) >= 63:
                    place("vmcnt", vm, len(vm) - 63, False)
                vm.append(ins)
            elif ins.cls == "ds":
                lg.append(ins)
            out.append(ins)
        self.ins = out

    @staticmethod
    def _need_states(p, c):
        n = 0
        pw, cr, cw = set(p.wr), set(c.rd), set(c.wr)
        vec = lambda s: {x for x in s if x[0] in "va" and x != "vcc"}
        sg = lambda s: {x for x in s if x[0] == "s" or x == "vcc"}
        if p.cls == "mfma":
            passes = 8 if "32x32" in p.mn else 4
            big = {4: 8, 8: 12}[passes]
            if c.cls == "mfma":
                ops = [regs_of(o) for o in re.split(r",(?![^\[]*\])", c.text.split(None, 1)[1])]
                if pw & (set(ops[1]) | set(ops[2])):
                    n = max(n, big)
                if pw & set(ops[3]) and set(ops[3]) != pw:
                    n = max(n, {4: 6, 8: 10}[passes])
                if pw & set(ops[0]) and set(ops[3]) != pw:
                    n = max(n, big)
            elif c.cls in ("valu", "ds", "vm"):
                if pw & (cr | cw):
                    n = max(n, big)
                if c.cls == "valu":
                    pc = regs_of(re.split(r",(?![^\[]*\])", p.text.split(None, 1)[1])[3])
                    if set(pc) & cw:
                        n = max(n, {4: 3, 8: 7}[passes])
        if p.cls == "valu":
            pv, ps = vec(pw), sg(pw)
            if c.cls == "mfma" and pv & cr:
                n = max(n, 2)
            if c.cls == "valu":
                if pv & cr:
                    if p.mn.startswith(TRANS):
                        n = max(n, 1)
                    if c.mn.startswith("v_permlane") or "_dpp" in c.mn:
                        n = max(n, 2)
                    if c.mn.startswith(("v_readfirstlane", "v_readlane")):
                        n = max(n, 1)
                    if p.mn.startswith("v_dot2") and not (c.mn == p.mn):
                        n = max(n, 3)
                if ps & cr:
                    n = max(n, 2)
                if "vcc" in ps and c.mn.startswith("v_cndmask") and "vcc" in c.text:
                    n = max(n, 2)
            if c.cls in ("ds", "vm") and pv & cr and p.mn.startswith("v_dot2"):
                n = max(n, 3)
            if c.cls == "vm" and ps & cr:
                n = max(n, 5)
            if c.cls in ("salu", "branch") and ps & (cr | ({"vcc"} if "vcc" in c.mn else set())):
                n = max(n, 1)
        if p.cls == "salu" and "m0" in pw and c.cls == "vm" and "m0" in cr:
            n = max(n, 1)
        if p.cls == "vm" and re.search(r"(store|atomic).*x[34]", p.mn) and c.cls in ("valu", "mfma", "ds", "vm"):
            data = set(regs_of(re.split(r",(?![^\[]*\])", p.text.split(None, 1)[1])[0]))
            if data & cw:
                n = max(n, 2)
        return n

    def _insert_nops(self):
        out = []
        for c in self.ins:
            if c.cls != "label":
                dist, short = 0, 0
                for p in reversed(out):
                    if p.cls == "label":
                        continue
                    if dist >= 12:
                        break
                    short = max(short, self._need_states(p, c) - dist)
                    dist += (int(p.text.split()[1]) + 1) if p.mn == "s_nop" else 1
                if short > 0:
                    out.append(Ins(f"s_nop {short - 1}"))
            out.append(c)
        self.ins = out

    def finish(self):
        self._insert_waits()
        self._insert_nops()
        for k, x in enumerate(self.ins):
            if x.mn.startswith("Lback"):
                assert self.ins[k - 1].cls == "branch", x.text
        lines = []
        for i in self.ins:
            lines.append(i.text if i.cls == "label" else "    " + i.text)
        return "\n".join(lines)
```

```python
from asmk import Ins, Reg


class E:
    def __init__(self, op, *a):
        self.op, self.a = op, a
    def __add__(s, o): return E("add", s, w(o))
    def __radd__(s, o): return E("add", s, w(o))
    def __sub__(s, o): return E("sub", s, w(o))
    def __rsub__(s, o): return E("sub", w(o), s)
    def __and__(s, o): return E("and", s, w(o))
    def __or__(s, o): return E("or", s, w(o))
    def __xor__(s, o): return E("xor", s, w(o))
    def __mul__(s, o): return E("mul", s, w(o))
    def __rmul__(s, o): return E("mul", s, w(o))
    def __lshift__(s, o): return E("shl", s, w(o))
    def __rshift__(s, o): return E("shr", s, w(o))
    def lt(s, o): return E("lt", s, w(o))
    def eq(s, o): return E("eq", s, w(o))
    def ge(s, o): return E("ge", s, w(o))


def w(x):
    if isinstance(x, E): return x
    if isinstance(x, int): return E("const", x)
    return E("reg", str(x))


def sel(c, a, b):
    return E("sel", c, w(a), w(b))


def vmin(a, b):
    return E("min", w(a), w(b))


def div(u, d):
    magic = (65536 + d - 1) // d
    for x in range(1024):
        assert (x * magic) >> 16 == x // d
    return (u * magic) >> 16


def compile_expr(dst, e, tmps):
    out = []
    free = [str(tmps[i]) for i in range(tmps.n)]

    def isv(x): return isinstance(x, str) and x[0] == "v"

    def ev(e, want=None):
        if e.op == "const": return e.a[0]
        if e.op == "reg": return e.a[0]
        if e.op == "sel":
            inl = lambda x: x if isinstance(x, int) and -16 <= x <= 64 else tov(x)
            a = inl(ev(e.a[1])); b = inl(ev(e.a[2]))
            c = e.a[0]
            x = tov(ev(c.a[0])); y = ev(c.a[1])
            if isinstance(y, int) and not -16 <= y <= 64: y = tov(y)
            out.append(Ins(f"v_cmp_{c.op}_i32 s[100:101], {x}, {y}"))
            rel(x); rel(y); rel(a); rel(b)
            d = want or free.pop()
            out.append(Ins(f"v_cndmask_b32 {d}, {b}, {a}, s[100:101]"))
            return d
        a = ev(e.a[0]); b = ev(e.a[1])
        op = e.op
        if op == "mul" and isinstance(b, int) and b > 0 and b & (b - 1) == 0:
            op, b = "shl", b.bit_length() - 1
        if op in ("add", "or", "xor", "shl", "shr") and b == 0:
            if want:
                out.append(Ins(f"v_mov_b32 {want}, {fmt(a)}")); rel(a); return want
            return a
        if op in ("shl", "shr"):
            a = tov(a); rel(a); rel(b); d = want or free.pop()
            out.append(Ins(f"v_{'lshl' if op == 'shl' else 'lshr'}rev_b32 {d}, {fmt(b)}, {a}"))
            return d
        if op == "sub":
            if isv(b): mn, x, y = "v_sub_u32", a, b
            else:
                a = tov(a); mn, x, y = "v_subrev_u32", b, a
        else:
            mn = {"add": "v_add_u32", "and": "v_and_b32", "or": "v_or_b32", "xor": "v_xor_b32",
                  "mul": "v_mul_u32_u24", "min": "v_min_u32"}[op]
            if isv(b): x, y = a, b
            else:
                a = tov(a); x, y = b, a
        rel(a); rel(b); d = want or free.pop()
        out.append(Ins(f"{mn} {d}, {fmt(x)}, {y}"))
        return d

    names = set(free)
    def rel(x):
        if x in names and x not in free: free.append(x)
    def tov(x):
        if isv(x): return x
        d = free.pop(); out.append(Ins(f"v_mov_b32 {d}, {fmt(x)}")); return d
    def fmt(x):
        return hex(x & 0xFFFFFFFF) if isinstance(x, int) and not -16 <= x <= 64 else str(x)

    r = ev(e, str(dst))
    if r != str(dst):
        out.append(Ins(f"v_mov_b32 {dst}, {fmt(r)}"))
    return out
```

```python
import sys, struct
from asmk import *
from lane import *

NAME = "sequential_preLN__linear_attn_block__glu_gated_swiglu__prompt"

class Cfg:
    stamps = False
    mapA = 512
    mapC = 512
    rot = 2
    spin = 60000
    touchW = 0
    touch0 = 1
    woLoop = 12
    woEvery = 24
    w13A = 10
    nPre0 = 0
    nPre = 0
    nKV = 8
    nB0 = 3
    bflag = 30
    cbar = 42
    cflag = 70
    cpoll = 4
    w2pre = 6
    w2n = (9, 7, 6, 6, 6, 6, 11, 3)
    dat = (432, 488, 556, 620)
    dspan = 54
    dlead = (50, 30, 30)
    abl = 0
    pubfirst = 0
    touchEarly = 1
    touchMid = 1
    outsc1 = 0
    clk = 0
    gtouch = 1
    gb = (2, 3, 3, 2)
    gat = (0, 2, 5)
    gx = 1
    early0 = 1
    early1 = 5
    woGap = 24
    hEarly = 8
    probe = -1
    probewg = 0

STATS = 0x0
KVO   = 0x4000
HST   = 0x12000
ZEND  = 0x16000
FLAGS = 0x1500000
FKV, FPQ, FH, FHH, FRND = FLAGS, FLAGS + 0x20000, FLAGS + 0x40000, FLAGS + 0xA0000, 0x20000
PQ    = 0x100000
HB    = 0x400000
HH    = 0x700000
FW    = 0xA0000
WOP   = 0xD00000
W13P  = 0xE00000
W2P   = 0x1200000
DIAG  = 0x1400000
WSZ   = 0x1800000
OOB   = 0x40000000

X_, WQ_, WO_, W1_, W3_, W2_, OUT_, DBG_, WS_ = [Reg("s", 8 + 4 * i, 4) for i in range(9)]
sWave, sCl, sMem, sSpin = "s3", "s4", "s5", "s6"
sT = [f"s{i}" for i in range(44, 64)]
V = lambda b, n=1: Reg("v", b, n)
A = lambda b, n=1: Reg("a", b, n)
f32 = lambda x: hex(struct.unpack("<I", struct.pack("<f", x))[0])
LOG2E = 1.4426950408889634

v16 = V(0)
vLane = V(1)
sClB, sMemB, sClC, sMemC, sWOp, sW13p, sW2p, sTg, sCg, sFWo, sFW13, sFW2 = [f"s{i}" for i in range(16, 28)]
W13R = [A(160 + 4 * n, 4) if n < 24 else A(48 + 4 * (n - 24), 4) if n < 48 else A(4 * (n - 48), 4) for n in range(60)]
PARK, PARKW = 61440, 24576
vTmp = V(2, 8)
L = w(vLane)
T16, G4 = L & 15, L >> 4


def mfma(d, a, b, c):
    return I(f"v_mfma_f32_16x16x32_bf16 {d}, {a}, {b}, {c}")


class Gen:
    def __init__(self, cfg):
        self.c = cfg
        self.p = Prog()
        self.slow = []
        self.nlab = 0
        self.nstamp = 0

    def calc(self, dst, e):
        return compile_expr(dst, e, vTmp)

    def stamp(self, i, mode=1):
        on = self.c.stamps == mode or (self.c.stamps and i in (0, 15) and mode == 1)
        return [I(f"{'s_memtime' if self.c.clk else 's_memrealtime'} s[{64 + 2 * i}:{65 + 2 * i}]")] if on else []

    def poll(self, vdst, vaddr, srd, soff, want, mask=None):
        ld = f"buffer_load_dword {vdst}, {vaddr}, {srd}, {soff} offen sc1"
        self.nlab += 1
        k = self.nlab
        test = [f"v_cmp_gt_u32 vcc, {want}, {vdst}" if want != -1 else f"v_cmp_eq_u32 vcc, -1, {vdst}"]
        test += [f"s_cbranch_vccnz Lslow{k}"] if mask is None else [f"s_and_b32 vcc_lo, vcc_lo, {mask:#x}", f"s_cbranch_scc1 Lslow{k}"]
        self.slow.append(f"""Lslow{k}:
    s_cmp_eq_u32 {sSpin}, 0
    s_cbranch_scc1 Lback{k}
    s_sub_u32 {sSpin}, {sSpin}, 1
    {ld}
    s_waitcnt vmcnt(0)
    {test[0]}
    s_nop 1
    """ + "\n    ".join(test[1:]) + f"""
    s_branch Lback{k}""")
        return I(ld), glue([I(t) for t in test] + [I(f"Lback{k}:")])

    def lines(self, dst, n):
        return self.calc(dst, sel(L.lt(n), L << 7, OOB))

    def mapping(self, mode, phase, sCl=sCl, sMem=sMem):
        p = self.p
        if mode == 256:
            p(f"""s_and_b32 {sCl}, s2, 7
                  s_lshl_b32 {sCl}, {sCl}, 1
                  s_lshr_b32 {sT[0]}, s2, 7
                  s_add_u32 {sCl}, {sCl}, {sT[0]}
                  s_bfe_u32 {sMem}, s2, 0x40003""")
        else:
            p(f"""s_and_b32 {sCl}, s2, 6
                  s_lshl_b32 {sCl}, {sCl}, 1
                  s_lshr_b32 {sT[0]}, s2, 6
                  s_add_u32 {sCl}, {sCl}, {sT[0]}
                  s_and_b32 {sT[0]}, s2, 1
                  s_bfe_u32 {sMem}, s2, 0x30003""")
            if phase == "A":
                p(f"""s_lshl_b32 {sT[1]}, {sT[0]}, 2
                      s_lshl_b32 {sT[2]}, {sT[0]}, 1
                      s_add_u32 {sT[3]}, {sT[2]}, 4
                      s_add_u32 {sT[2]}, {sT[2]}, 6
                      s_cmp_lt_u32 {sMem}, 6
                      s_cselect_b32 {sT[2]}, {sT[3]}, {sT[2]}
                      s_cmp_lt_u32 {sMem}, 4
                      s_cselect_b32 {sT[2]}, {sT[1]}, {sT[2]}
                      s_add_u32 {sMem}, {sMem}, {sT[2]}""")
            else:
                p(f"""s_lshl_b32 {sT[0]}, {sT[0]}, 3
                      s_add_u32 {sMem}, {sMem}, {sT[0]}""")

    def prologue(self):
        p = self.p
        p.add(self.stamp(0))
        p(f"""s_load_dwordx2 {X_[0:2]}, s[0:1], 0
              s_load_dwordx2 {WQ_[0:2]}, s[0:1], 8
              s_load_dwordx16 s[80:95], s[0:1], 16
              s_cmp_ge_u32 s2, 256
              s_cbranch_scc1 Lexit
              s_getpc_b64 s[60:61]
              Lpc:
              s_lshr_b32 s62, s2, 3
              s_lshl_b32 s62, s62, 11
              v_lshrrev_b32 v3, 4, v0
              v_lshl_add_u32 v3, v3, 7, s62
              v_min_u32 v3, Lcodeend-Lpc-4, v3
              global_load_dword v248, v3, s[60:61]
              v_lshrrev_b32 v2, 6, v0
              v_and_b32 {vLane}, 63, v0
              v_readfirstlane_b32 {sWave}, v2
              s_mov_b32 {X_[2]}, 2621440
              s_mov_b32 {X_[3]}, 0x20000""")
        self.mapping(self.c.mapA, "A")

    def late_srds(self):
        o = [I(f"s_mov_b64 {srd[0:2]}, s[{at}:{at + 1}]") for srd, at in ((OUT_, 90), (DBG_, 92), (WS_, 94))]
        for srd, size in ((OUT_, 2621440), (DBG_, 256), (WS_, WSZ)):
            o += [I(f"s_mov_b32 {srd[2]}, {size}"), I(f"s_mov_b32 {srd[3]}, 0x20000")]
        return o + [I(f"s_mov_b32 {sSpin}, {self.c.spin}")]

    def setupBCD(self):
        p = self.p
        self.mapping(256, "B", sClB, sMemB)
        self.mapping(self.c.mapC, "C", sClC, sMemC)
        u = sT[0]
        p(f"""s_mul_i32 {sTg}, {sMemB}, 52
              s_lshr_b32 {sTg}, {sTg}, 8
              s_mul_i32 {u}, {sTg}, 5
              s_sub_u32 {sCg}, {sMemB}, {u}
              s_lshl_b32 {u}, {sCg}, 2
              s_add_u32 {u}, {u}, {sWave}
              s_mul_i32 {sWOp}, {u}, 40960
              s_add_u32 {sWOp}, {sWOp}, {WOP}
              s_cmp_eq_u32 {sMemB}, 15
              s_cselect_b32 {sWOp}, {OOB}, {sWOp}
              s_lshr_b32 {u}, {u}, 1
              s_lshl_b32 {u}, {u}, 9
              s_add_u32 {sFWo}, {u}, {FW + 256 * 128}
              s_lshl_b32 {u}, {sMemC}, 2
              s_add_u32 {u}, {u}, {sWave}
              s_mul_i32 {sW13p}, {u}, 61440
              s_add_u32 {sW13p}, {sW13p}, {W13P}
              s_lshr_b32 {u}, {sMemC}, 1
              s_mul_i32 {u}, {u}, {20 * 128}
              s_add_u32 {sFW13}, {u}, {FW}
              s_and_b32 {u}, {sMemB}, 7
              s_lshl_b32 {u}, {u}, 2
              s_add_u32 {u}, {u}, {sWave}
              s_mul_i32 {sW2p}, {u}, 61440
              s_add_u32 {sW2p}, {sW2p}, {W2P}
              s_bfe_u32 {u}, {sMemB}, 0x10002
              s_lshl_b32 {u}, {u}, 2
              s_add_u32 {u}, {u}, {sWave}
              s_mul_i32 {u}, {u}, {12 * 128}
              s_add_u32 {sFW2}, {u}, {FW + 160 * 128}""")

    def wload(self, dst, sp, n):
        o = [I(f"buffer_load_dwordx4 {dst}, {v16}, {WS_}, {sp} offen offset:{1024 * (n & 3)}{'' if self.c.abl & 32 else ' sc1'}")]
        if n & 3 == 3:
            o.append(I(f"s_add_u32 {sp}, {sp}, 4096"))
        return o

    def wdma(self, sM, lds, sp, n):
        o = [I(f"s_add_u32 m0, {sM}, {lds - 1024 * (n & 3)}"),
             I(f"buffer_load_dwordx4 {v16}, {WS_}, {sp} offen offset:{1024 * (n & 3)}{'' if self.c.abl & 32 else ' sc1'} lds")]
        if n & 3 == 3:
            o.append(I(f"s_add_u32 {sp}, {sp}, 4096"))
        return o

    def wo_groups(self):
        return [self.wload(A(4 * n, 4), sWOp, n) for n in range(40)]

    def tailA(self, wo_left, vF, vFA, pub):
        p = self.p
        p.add(self.lines(vFA, 20))
        ld, chk = self.poll(vF, vFA, WS_, sFW13, 1, 0xfffff)
        p.add(ld)
        p.add(wo_left)
        if self.c.pubfirst:
            p.add(pub)
        p.add(chk)
        for n in range(self.c.w13A):
            p.add(self.wload(W13R[n], sW13p, n))
        if not self.c.pubfirst:
            p.add(pub)

    def rotation(self, sK):
        if self.c.rot:
            self.p(f"""s_and_b32 {sK}, s2, {7 if self.c.rot == 1 else 6}
                       s_mul_i32 {sK}, {sK}, 5
                       s_lshr_b32 {sK}, {sK}, 2""")
        else:
            self.p(f"s_mov_b32 {sK}, 0")

    XREG, WREG, WSLOT, PLANE, CSX = 0, 49152, 20512, 10256, 110688
    vDX, vDW = V(10, 4), V(14, 5)
    sA = sT[4:14]

    def dmaA(self, i):
        sWm, sWn, sXb, sWb, sK, sX, sW, sMX, sMW, sU = self.sA
        sl = i % 3
        o = [I(f"s_lshl_b32 {sU}, {sK}, 7"), I(f"s_add_u32 {sX}, {sXb}, {sU}"),
             I(f"s_mul_i32 {sU}, {sK}, {64 * 3840}"), I(f"s_add_u32 {sW}, {sWb}, {sU}"),
             I(f"s_add_u32 {sK}, {sK}, 1"), I(f"s_cmp_eq_u32 {sK}, 10"), I(f"s_cselect_b32 {sK}, 0, {sK}")]
        glue(o)
        order = [("x", 0), ("w", 0), ("w", 1), ("x", 1), ("w", 2), ("x", 2), ("w", 3), ("x", 3), ("w", 4)]
        if i == 0:
            order.sort(key=lambda e: e[0], reverse=True)
        for k, n in order:
            if k == "x":
                o.append(I(f"s_add_u32 m0, {sMX}, {self.XREG + sl * 16384 + n * 1024}"))
                o.append(I(f"buffer_load_dwordx4 {self.vDX[n]}, {X_}, {sX} offen lds"))
            else:
                o.append(I(f"s_add_u32 m0, {sMW}, {sl * self.WSLOT + n * 1024}"))
                o.append(I(f"buffer_load_dwordx4 {self.vDW[n]}, {WQ_}, {sW} offen lds"))
        return o

    def touchA(self, j):
        c = self.c
        vTW = V(25)
        rows = -(-c.gb[j] * 64 // 6)
        o = [I(f"s_mul_i32 s99, s98, {rows}"), I(f"s_add_u32 s99, s99, s7")]
        if j:
            o.append(I(f"s_add_u32 s99, s99, {64 * sum(c.gb[:j])}"))
        o += [I(f"v_min_u32 {vTW}, {rows - 1}, {vLane}"), I(f"v_add_u32 {vTW}, s99, {vTW}"),
              I(f"v_subrev_u32 v247, 640, {vTW}"), I(f"v_min_u32 {vTW}, {vTW}, v247"),
              I(f"v_mul_u32_u24 {vTW}, 3840, {vTW}"),
              I(f"buffer_load_dword {V(240 + j)}, {vTW}, {WQ_}, s97 offen")]
        return o

    def headA(self):
        p, c = self.p, self.c
        vDX, vDW = self.vDX, self.vDW
        sWm, sWn, sXb, sWb, sK, sX, sW, sMX, sMW, sU = self.sA
        p.add(self.calc(vDX[0], (L >> 3) * 1280 + (((L & 7) ^ (L >> 4)) << 4)))
        p(f"""s_lshl_b32 {sXb}, {sCl}, 2
              s_add_u32 {sXb}, {sXb}, {sWave}
              s_mul_i32 {sXb}, {sXb}, {32 * 1280}
              s_lshl_b32 {sMX}, {sWave}, 12""")
        p.add(self.calc(vDX[1], (w(vDX[0]) ^ 64) + 8 * 1280))
        p.add(self.calc(vDX[2], w(vDX[0]) + 16 * 1280))
        p.add(self.calc(vDX[3], w(vDX[1]) + 16 * 1280))
        self.rotation(sK)
        d0 = self.dmaA(0)
        p.add(d0[:2])
        p.add(self.stamp(1, 4))
        p("s_waitcnt lgkmcnt(0)")
        p.add(self.stamp(2, 4))
        p.add(d0[7:15])
        p(f"""s_mov_b32 {WQ_[2]}, 2457600
              s_mov_b32 {WQ_[3]}, 0x20000""")
        if c.gtouch:
            assert c.mapA == 512
            p(f"""s_lshr_b32 s96, s2, 6
                  s_mul_i32 s96, s96, 6
                  s_bfe_u32 {sU}, s2, 0x30003
                  s_add_u32 s96, s96, {sU}
                  s_lshl_b32 s96, s96, 2
                  s_add_u32 s96, s96, {sWave}
                  s_and_b32 s97, s96, 15
                  s_lshr_b32 s98, s96, 4
                  s_mul_i32 {sU}, s97, 52
                  s_lshr_b32 {sU}, {sU}, 8
                  s_and_b32 {sW}, s2, 1
                  s_add_u32 {sU}, {sU}, {sW}
                  s_mul_i32 {sU}, {sU}, 5
                  s_add_u32 {sU}, {sU}, s97
                  s_lshl_b32 {sU}, {sU}, 7
                  s_cmp_eq_u32 s97, 15
                  s_cselect_b32 s97, {OOB}, {sU}
                  s_lshl_b32 s7, {sK}, 6""")
            p.add(self.touchA(0))
        p(f"""s_lshr_b32 {sWm}, {sWave}, 1
              s_and_b32 {sWn}, {sWave}, 1
              s_cmp_lt_u32 {sMem}, 8
              s_cselect_b32 {sWb}, 1, 2
              s_cselect_b32 {sU}, 8, 1
              s_cselect_b32 {sW}, 8, -16
              s_mul_i32 {sWb}, {sWb}, {sMem}
              s_mul_i32 {sU}, {sU}, {sWm}
              s_add_u32 {sWb}, {sWb}, {sU}
              s_add_u32 {sWb}, {sWb}, {sW}
              s_mul_i32 {sWb}, {sWb}, 160
              s_mul_i32 {sU}, {sWn}, {32 * 3840}
              s_add_u32 {sWb}, {sWb}, {sU}
              s_mul_i32 {sMW}, {sWm}, {self.PLANE}
              s_mul_i32 {sU}, {sWn}, 5120
              s_add_u32 {sMW}, {sMW}, {sU}
              s_add_u32 {sMW}, {sMW}, {self.WREG}
              v_lshlrev_b32 {v16}, 4, {vLane}
              v_mul_u32_u24 v2, 6554, {vLane}
              s_movk_i32 {sT[14]}, -160
              s_movk_i32 {sT[15]}, 3840""")
        p.add(d0[2:7])
        for n in range(5):
            if n:
                p(f"v_add_u32 v2, {64 * 6554}, v2")
            p(f"""v_lshrrev_b32 v3, 16, v2
                  v_lshrrev_b32 v4, 17, v2
                  v_xor_b32 v4, v3, v4
                  v_and_b32 v4, 4, v4
                  v_mul_u32_u24 v4, 3, v4
                  v_xor_b32 v4, v3, v4
                  v_mad_i32_i24 v3, v3, {sT[14]}, {v16}
                  v_mad_i32_i24 {vDW[n]}, v4, {sT[15]}, v3""")
            if n:
                p(f"v_add_u32 {vDW[n]}, {1024 * n}, {vDW[n]}")
            if n < c.early0:
                p.add(d0[15 + 2 * n: 17 + 2 * n])
        p.add(self.stamp(3, 4))
        self.headvm = [x for x in p.ins if x.cls == "vm"]

    def gemmA(self, kind):
        p, c = self.p, self.c
        kv = kind == "kv"
        XREG, WREG, WSLOT, PLANE, CSX = self.XREG, self.WREG, self.WSLOT, self.PLANE, self.CSX
        vAX, vAW = V(19, 2), V(21, 4)
        ones = V(26, 4)
        FX = [V(30 + 36 * s, 16) for s in range(2)]
        FW = [V(46 + 36 * s, 20) for s in range(2)]
        acc = [[V(102 + 20 * m + 4 * b, 4) for b in range(5)] for m in range(4)]
        cs = [V(182 + 4 * b, 4) for b in range(5)]
        st = V(202, 48)
        vF, vFA = V(250), V(251)
        vSA = V(252)
        vCA, vFB = V(253), V(254)
        sWm, sWn, sXb, sWb, sK, sX, sW, sMX, sMW, sU = self.sA
        dmas = {}
        def dma(i):
            o = self.dmaA(i)
            dmas[i] = o[-1]
            return o
        assert c.early0 < 5
        p(".RESET")
        touch = [self.touchA(j) for j in range(1, len(c.gb))] if c.gtouch else []
        g, r, cq = L >> 4, (L >> 2) & 3, L & 3
        for ss in range(2):
            p(f"s_xor_b32 {sU}, {sWm}, {ss}\ns_lshl_b32 {sT[14]}, {sU}, 2\ns_lshl_b32 {sT[15]}, {sWm}, 13")
            p.add(self.calc(vAX[ss], (T16 << 7) + (((G4 + sT[14]) ^ ((T16 >> 1) & 7)) << 4) + sT[15] + XREG))
            if kv:
                p(f"s_mul_i32 {sT[14]}, {sU}, 5120\ns_mul_i32 {sT[15]}, {sWn}, 80\ns_add_u32 {sT[14]}, {sT[14]}, {sT[15]}")
            else:
                p(f"s_mul_i32 {sT[14]}, {sU}, 5120\ns_mul_i32 {sT[15]}, {sWn}, {PLANE}\ns_add_u32 {sT[14]}, {sT[14]}, {sT[15]}")
            p.add(self.calc(vFA, (((g >> 1) << 4) + ((g & 1) << 2) + r) * 160 + sT[14] + WREG))
            p.add(self.calc(vAW[2 * ss], w(vFA) + (cq << 3)))
            p.add(self.calc(vAW[2 * ss + 1], w(vFA) + 32 + ((cq & 1) * 40 + (cq >> 1) * PLANE if kv else cq * 40)))
        for i in range(4):
            p(f"v_mov_b32 {ones[i]}, 0x3f803f80")
        p.capture()
        p.add(self.late_srds())
        p.add(self.calc(vFA, L << 2))
        p(f"""s_lshl_b32 {sT[14]}, {sCl}, 9
              s_lshl_b32 {sT[15]}, {sWm}, 8
              s_add_u32 {sT[14]}, {sT[14]}, {sT[15]}""")
        p.add(self.calc(vSA, ((G4 << 4) if kv else (T16 << 2)) + sT[14] + STATS))
        p(f"s_mul_i32 {sT[14]}, {sWave}, 5120")
        p.add(self.calc(vCA, (L << (2 if kv else 4)) + sT[14] + CSX))
        p.add(self.lines(vFB, 4))
        self.setupBCD()
        sEps, sOne = Reg("s", 60, 2), Reg("s", 62, 2)
        p(f"s_mov_b32 {sEps[0]}, {f32(1e-6)}\ns_mov_b32 {sEps[1]}, {f32(1e-6)}")
        p(f"s_mov_b32 {sOne[0]}, {f32(LOG2E)}\ns_mov_b32 {sOne[1]}, {f32(LOG2E)}")
        late = glue(p.release())

        def reads(i, ss):
            sl, s = i % 3, ss
            o = []
            def wr(b):
                if kv:
                    a, off = (vAW[2 * ss], (b >> 1) * PLANE + (b & 1) * 40) if b < 4 else (vAW[2 * ss + 1], 0)
                else:
                    a, off = (vAW[2 * ss], 40 * b) if b < 4 else (vAW[2 * ss + 1], 0)
                return [I(f"ds_read_b64_tr_b16 {FW[s][4 * b + 2 * hf: 4 * b + 2 * hf + 2]}, {a} offset:{sl * WSLOT + off + hf * 1280}")
                        for hf in range(2)]
            xr = lambda m: [I(f"ds_read_b128 {FX[s][4 * m: 4 * m + 4]}, {vAX[ss]} offset:{sl * 16384 + m * 2048}")]
            o += xr(0)
            for b in range(5):
                o += wr(b)
            for m in range(1, 4):
                o += xr(m)
            return o

        def mm(i, ss):
            o = []
            first = i == 0 and ss == 0
            for m in range(4):
                for b in range(5):
                    x, wv = FX[ss][4 * m: 4 * m + 4], FW[ss][4 * b: 4 * b + 4]
                    cc = "0" if first else acc[m][b]
                    o.append(mfma(acc[m][b], x, wv, cc) if kv else mfma(acc[m][b], wv, x, cc))
            if ss == 0 or i == 9:
                for b in range(5):
                    wv = FW[ss][4 * b: 4 * b + 4]
                    cc = "0" if first else cs[b]
                    o.append(mfma(cs[b], ones, wv, cc) if kv else mfma(cs[b], wv, ones, cc))
            return o

        p.add(self.stamp(4, 4))
        p.add(dma(0)[15 + 2 * c.early0:])
        if touch and c.gat[0] == 0:
            p.add(touch.pop(0))
        d1 = dma(1)
        n1 = 7 + 2 * c.early1
        p.add(d1[:n1])
        p.add(self.stamp(5, 4))
        p.add(waitvm(dmas[0]))
        p.add(self.stamp(6, 4))
        p("s_barrier")
        p.add(self.stamp(1))
        p.add(reads(0, 0))
        f0ld, f0chk = self.poll(vF, vFA, DBG_, 0, 1)
        wold, wochk = self.poll(vF, vFB, WS_, sFWo, 1, 0xf)
        wo = self.wo_groups()
        take = lambda n: [x for _ in range(min(n, len(wo))) for x in wo.pop(0)]
        stl = []
        for h in range(2):
            if h:
                stl.append(I(f"s_mov_b32 {sU}, 8192"))
            for m in range(4):
                stl.append(I(f"buffer_load_dwordx4 {st[16 * h + 4 * m: 16 * h + 4 * m + 4]}, {vSA}, {WS_}, {sU if h else 0} offen offset:{64 * m} sc1") if kv else
                           I(f"buffer_load_dword {st[4 * h + m]}, {vSA}, {WS_}, {sU if h else 0} offen offset:{64 * m} sc1"))
        csp = V(30, 20)
        def paced(d, g0, g1):
            o = [(x, g0) for x in d[:7]]
            for k in range(9):
                g = g0 + 4 + (g1 - g0 - 4) * k // 9
                o += [(d[7 + 2 * k], g - 1), (d[8 + 2 * k], g)]
            return o
        sS = []
        mf, sR, sD, sV, must = [], [], [], [(x, 50) for x in late], [(late[-1], f0ld)]
        sD += [(x, 0) for x in d1[n1:]]
        batch = lambda k, g: [(x, g) for x in touch.pop(0)] if touch and k in c.gat else []
        sD += batch(1, 0) + paced(dma(2), 4, 30) + batch(2, 30)
        for i in range(10):
            G = len(mf)
            mf += mm(i, 0)
            Gb = len(mf) - 1
            mf += mm(i, 1)
            if i:
                after(mf[G], rn[-1])
            sS += [(x, G) for x in self.stamp(1 + i, 2)]
            sR += [(x, G + g) for x, g in spread(reads(i, 1), 0, 15)]
            bar = I("s_barrier")
            after(mf[Gb + 1], bar)
            sR += [(I("s_waitcnt lgkmcnt(0)"), Gb)] + ([(after(waitvm(dmas[i + 1]), dmas[i + 1]), Gb)] if i < 9 else []) + [(bar, Gb)]
            if i < 9:
                rn = reads(i + 1, 0)
                sR += [(x, Gb + 1 + g) for x, g in spread(rn, 0, 13)]
            if i + 3 < 10:
                d = dma(i + 3)
                must.append((bar, d[8]))
                sD += paced(d, Gb + 1 + (8 if i == 0 else 0), Gb + (38 if touch and i + 3 in c.gat else 45)) + batch(i + 3, Gb + 36)
            if i == 5:
                sD += [(f0ld, Gb + 44)]
            if i == 6:
                sD += [(x, Gb + 44) for x in f0chk + [wold]] + spread(stl, Gb + 48, Gb + 48 + (36 if kv else 16))
            if i == 8:
                cw = ([I(f"ds_write_b32 {vCA}, {cs[b][0]} offset:{256 * b}") for b in range(5)] if kv else
                      [I(f"ds_write_b128 {vCA}, {cs[b]} offset:{1024 * b}") for b in range(5)])
                sR += [(x, Gb + 15) for x in cw]
                must.append((cw[-1], mm9 := None))
                sD += [(x, G + c.woGap) for x in wochk] + spread(take(c.woLoop), G + c.woGap + 1, G + 92)
                pa = I(f"v_add_u32 v255, {sT[0]}, {vCA}")
                nv = len(sV)
                sV += [(I(f"s_xor_b32 {sT[0]}, {sWave}, 2"), G), I(f"s_sub_u32 {sT[0]}, {sT[0]}, {sWave}"),
                       I(f"s_mul_i32 {sT[0]}, {sT[0]}, 5120"), pa]
                p.capture()
                if kv:
                    self.addrKV(sWm, sWn)
                sV += p.release()
                must.append((dmas[9], sV[nv][0]))
            if i == 9:
                must[[k for k, m_ in enumerate(must) if m_[1] is None][0]] = (cw[-1], mf[G + 20])
                rd = ([I(f"ds_read_b32 {csp[b]}, v255 offset:{256 * b}") for b in range(5)] if kv else
                      [I(f"ds_read_b128 {csp[4 * b: 4 * b + 4]}, v255 offset:{1024 * b}") for b in range(5)])
                sR += [(x, Gb + 1) for x in rd]
                must.append((pa, rd[0]))
        for x, y in must:
            after(y, x)
        body = weave(mf, [sS, sR, sD, sV])
        p.add(body)
        p.add(self.stamp(2)); p.add(self.stamp(11, 2))
        T = V(66, 36)
        if kv:
            self.epiKV(acc, cs, csp, st, T, sEps, sOne, sWm, sWn, sU, wo)
        else:
            self.epiQ(acc, cs, csp, st, T, sEps, sOne, sWm, sWn, sU, wo)

    def phi4(self, a, out2, RS, RSL, T, sEps, bc):
        o = []
        t, s = T[0:4], T[4:8]
        for h in range(2):
            pr = slice(2 * h, 2 * h + 2)
            rs, sl = bc(RS, h), bc(RSL, h)
            o.append(I(f"v_pk_mul_f32 {s[pr]}, {a[pr]}, {sl[0]}{sl[1][0]}"))
            o.append(I(f"v_pk_fma_f32 {t[pr]}, {a[pr]}, {rs[0]}, {sEps}{rs[1][1]}"))
        for i in range(4):
            o.append(I(f"v_exp_f32 {s[i]}, {s[i]} clamp"))
        for i in range(4):
            o.append(I(f"v_max_f32 {t[i]}, {sEps[0]}, {t[i]}"))
        for h in range(2):
            pr = slice(2 * h, 2 * h + 2)
            o.append(I(f"v_pk_add_f32 {t[pr]}, {t[pr]}, {s[pr]}"))
        for h in range(2):
            o.append(I(f"v_cvt_pk_bf16_f32 {out2[h]}, {t[2 * h]}, {t[2 * h + 1]}"))
        return o

    def addrKV(self, sWm, sWn):
        p = self.p
        vI, vR, vG, vGl = self.kvaddr = V(10, 6), V(16), V(17), V(18)
        u, sKV = sT[1], sT[14]
        p(f"""s_mul_i32 {u}, {sWm}, 7168
              s_mul_i32 {sT[2]}, {sWn}, 3584
              s_add_u32 {u}, {u}, {sT[2]}""")
        dump = w(v16) + 16384
        for lo in (2, 3):
            p.add(self.calc(V(14 + lo), sel(T16.eq(0), 64, sel(((T16 >> 2)).eq(lo), (T16 & 3) << 4, OOB))))
        r2, r3 = w(V(16)), w(V(17))
        p.add(self.calc(vI[0], (G4 << 8) + (T16 << 4) + u))
        p.add(self.calc(vI[1], vmin(G4 * 80 + r2 + 1280 + u, dump)))
        p.add(self.calc(vI[2], vmin(G4 * 80 + r3 + (1280 + 1792) + u, dump)))
        p.add(self.calc(vI[3], sel(G4.eq(0), (T16 << 4) + 1024 + u, dump)))
        p.add(self.calc(vI[4], sel(G4.eq(1), (T16 << 4) + (1024 + 1792) + u, dump)))
        p.add(self.calc(vI[5], vmin(sel(G4.eq(0), r2, sel(G4.eq(1), r3 + 1792, OOB)) + (1280 + 320) + u, dump)))
        p(f"s_mul_i32 {u}, {sWave}, 1792")
        p.add(self.calc(vG, L << 2))
        p.add(self.calc(vR, w(vG) + u))
        p.add(self.calc(vGl, sel(L.lt(36), w(vG), OOB)))
        p(f"""s_lshl_b32 {sKV}, {sMem}, 2
              s_add_u32 {sKV}, {sKV}, {sWave}
              s_mul_i32 {sKV}, {sKV}, 1792
              s_add_u32 {sKV}, {sKV}, {KVO}""")

    def epiKV(self, acc, cs, csp, st, T, sEps, sLog, sWm, sWn, sU, wo):
        p = self.p
        p.capture()
        RS, NM, RSL = st[0:16], st[16:32], st[32:48]
        C = V(50, 6)
        for b in range(5):
            p(f"v_add_f32 {C[b]}, {cs[b][0]}, {csp[b]}")
        for h in range(8):
            p(f"v_pk_mul_f32 {RSL[2 * h: 2 * h + 2]}, {RS[2 * h: 2 * h + 2]}, {sLog}")
        P = [V(182, 8), V(190, 8), V(56, 8), V(20, 8), V(30, 8), V(38, 8)]
        p(f"v_and_b32 {T[30]}, 8, {vLane}\nv_cmp_eq_u32 vcc, 0, {T[30]}\nv_mov_b32 {T[31]}, 0x3f803f80")
        k = 0
        for m in range(4):
            bc = lambda R_, h: (R_[4 * m + 2 * h: 4 * m + 2 * h + 2], ("", ""))
            for b in range(5):
                a = acc[m][b]
                cp = C[b & ~1: (b & ~1) + 2]
                sel_ = f" op_sel:[0,{b & 1},0] op_sel_hi:[1,{b & 1},1]"
                for h in range(2):
                    p(f"v_pk_fma_f32 {a[2 * h: 2 * h + 2]}, {NM[4 * m + 2 * h: 4 * m + 2 * h + 2]}, {cp}, {a[2 * h: 2 * h + 2]}{sel_}")
            for b in (0, 1, 4):
                p.add(self.phi4(acc[m][b], P[b][2 * m: 2 * m + 2], RS, RSL, T[8 * (k % 3): 8 * (k % 3) + 8], sEps, bc)); k += 1
            for b in (2, 3, 4):
                a = acc[m][b]
                d = P[5 if b == 4 else b][2 * m: 2 * m + 2]
                for h in range(2):
                    p(f"v_pk_mul_f32 {a[2 * h: 2 * h + 2]}, {a[2 * h: 2 * h + 2]}, {RS[4 * m + 2 * h: 4 * m + 2 * h + 2]}")
                for h in range(2):
                    p(f"v_cvt_pk_bf16_f32 {d[h]}, {a[2 * h]}, {a[2 * h + 1]}")
                if b == 4:
                    for h in range(2):
                        p(f"v_cndmask_b32 {d[h]}, {d[h]}, {T[31]}, vcc")
        body, wo = mix(p.release(), wo, self.c.woEvery)
        p.add(body)
        p.add(self.stamp(12, 2))
        prods = [(0, 2), (1, 3), (0, 5), (1, 5), (4, 2), (4, 3), (4, 5)]
        Dk = [V(102 + 4 * i, 4) for i in range(7)]
        for s in range(2):
            for i, (a, b) in enumerate(prods):
                p.add(mfma(Dk[i], P[a][4 * s: 4 * s + 4], P[b][4 * s: 4 * s + 4], "0" if s == 0 else Dk[i]))
        vI, vR, vG, vGl = self.kvaddr
        p(f"ds_write_b128 {vI[0]}, {Dk[0]}\nds_write_b128 {vI[0]}, {Dk[1]} offset:1792")
        for i in range(2, 7):
            p(f"ds_write_b128 {vI[i - 1]}, {Dk[i]}")
        p("s_waitcnt lgkmcnt(0)\ns_barrier")
        Y = V(146, 14)
        for i in range(7):
            p(f"ds_read2st64_b32 {Y[2 * i: 2 * i + 2]}, {vR} offset0:{i} offset1:{28 + i}")
        for i in range(7):
            p(f"v_add_f32 {Y[2 * i]}, {Y[2 * i]}, {Y[2 * i + 1]}")
            at = p(f"buffer_atomic_add_f32 {Y[2 * i]}, {vG if i < 6 else vGl}, {WS_}, {sT[14]} offen offset:{256 * i}")
        p.add(self.stamp(3)); p.add(self.stamp(13, 2))
        p(f"""s_lshl_b32 {sU}, {sMem}, 4
              s_add_u32 {sU}, {sU}, {sCl}
              s_lshl_b32 {sU}, {sU}, 7
              s_add_u32 {sU}, {sU}, {FKV}""")
        p(f"s_cmp_eq_u32 {sWave}, 0\ns_cselect_b32 {sT[14]}, 8, 0")
        p.add(self.calc(vG, sel(L.lt(sT[14]), L << 14, OOB)))
        p(f"v_mov_b32 {vR}, 1")
        pub = [waitvm(at), I("s_barrier"), I(f"buffer_store_dword {vR}, {vG}, {WS_}, {sU} offen sc1")] + self.stamp(14, 2)
        self.tailA(wo, V(250), V(251), pub)

    def epiQ(self, acc, cs, csp, st, T, sEps, sLog, sWm, sWn, sU, wo):
        p = self.p
        RS, NM, RSL = st[0:4], st[4:8], st[8:12]
        for b in range(5):
            for h in range(2):
                p(f"v_pk_add_f32 {cs[b][2 * h: 2 * h + 2]}, {cs[b][2 * h: 2 * h + 2]}, {csp[4 * b + 2 * h: 4 * b + 2 * h + 2]}")
        for h in range(2):
            p(f"v_pk_mul_f32 {RSL[2 * h: 2 * h + 2]}, {RS[2 * h: 2 * h + 2]}, {sLog}")
        vO, v8 = V(10), V(11)
        p.add(self.calc(v8, L << 3))
        p(f"""s_lshl_b32 {sU}, {sCl}, 3
              s_lshl_b32 {sT[14]}, {sWm}, 2
              s_add_u32 {sU}, {sU}, {sT[14]}
              s_lshl_b32 {sU}, {sU}, 2
              s_add_u32 {sU}, {sU}, {sMem}
              s_sub_u32 {sU}, {sU}, 8
              s_lshl_b32 {sU}, {sU}, 1
              s_add_u32 {sU}, {sU}, {sWn}
              s_mul_i32 {sU}, {sU}, 2560
              s_add_u32 {sU}, {sU}, {PQ}""")
        k = 0
        p.capture()
        for m in range(4):
            O = V(30 + 12 * (m & 1), 10)
            e = m & 1
            bc = lambda R_, h: (R_[m & ~1: (m & ~1) + 2],
                                (f" op_sel:[0,{e}] op_sel_hi:[1,{e}]", f" op_sel:[0,{e},0] op_sel_hi:[1,{e},1]"))
            for b in range(5):
                a = acc[m][b]
                for h in range(2):
                    p(f"v_pk_fma_f32 {a[2 * h: 2 * h + 2]}, {cs[b][2 * h: 2 * h + 2]}, {NM[m & ~1: (m & ~1) + 2]}, {a[2 * h: 2 * h + 2]}"
                      f" op_sel:[0,{e},0] op_sel_hi:[1,{e},1]")
                ob = 2 * (0, 2, 3, 4, 1)[b]
                p.add(self.phi4(a, O[ob: ob + 2], RS, RSL, T[8 * (k % 3): 8 * (k % 3) + 8], sEps, bc)); k += 1
            p(f"""buffer_store_dwordx4 {O[0:4]}, {v16}, {WS_}, {sU} offen sc1
                  buffer_store_dwordx4 {O[4:8]}, {v16}, {WS_}, {sU} offen offset:1024 sc1
                  """)
            last = p(f"buffer_store_dwordx2 {O[8:10]}, {v8}, {WS_}, {sU} offen offset:2048 sc1")
            p(f"s_add_u32 {sU}, {sU}, {8 * 2560}")
        body, wo = mix(p.release(), wo, self.c.woEvery)
        p.add(body)
        p.add(self.stamp(3))
        p(f"""s_lshl_b32 {sU}, {sCl}, 2
              s_add_u32 {sU}, {sU}, {sMem}
              s_sub_u32 {sU}, {sU}, 8
              s_lshl_b32 {sU}, {sU}, 2
              s_add_u32 {sU}, {sU}, {sWave}
              s_lshl_b32 {sU}, {sU}, 7
              s_add_u32 {sU}, {sU}, {FPQ}""")
        p.add(self.calc(vO, sel(L.eq(0), 0, OOB)))
        p(f"v_mov_b32 {v8}, 1")
        pub = [waitvm(last), I(f"buffer_store_dword {v8}, {vO}, {WS_}, {sU} offen sc1"), I("s_barrier")]
        self.tailA(wo, V(250), V(251), pub)

    def relay(self, kind, sI, lds):
        p = self.p
        g, r, cq = L >> 4, (L >> 2) & 3, L & 3
        sS, sM, sD, sK2, sC2 = sT[10], sT[11], sT[12], sT[13], sT[14]
        vD, vR0, vR1 = V(64, 5), V(70), V(71)
        F = V(72, 96)
        p.capture()
        p(f"s_mul_i32 {sM}, {sWave}, 40960\ns_add_u32 {sM}, {sM}, {lds}")
        if kind == "w13":
            for n in range(3):
                u = L + 64 * n
                p.add(self.calc(vR0, div(u, 24)))
                p.add(self.calc(vD[n], w(vR0) * 3072 + ((u - w(vR0) * 24) << 4)))
            p(f"""s_mul_i32 {sC2}, {sI}, 3277
                  s_lshr_b32 {sC2}, {sC2}, 16
                  s_mul_i32 {sK2}, {sC2}, 20
                  s_sub_u32 {sK2}, {sI}, {sK2}
                  s_mul_i32 {sS}, {sK2}, {32 * 3072}
                  s_mul_i32 {sD}, {sC2}, 384
                  s_add_u32 {sS}, {sS}, {sD}""")
            for n in range(12):
                for pl, srd in ((0, W1_), (1, W3_)):
                    p(f"s_add_u32 m0, {sM}, {pl * 12304 + n * 1024}")
                    p(f"buffer_load_dwordx4 {vD[n % 3]}, {srd}, {sS} offen lds")
                if n % 3 == 2:
                    p(f"s_add_u32 {sS}, {sS}, {8 * 3072}")
        elif kind == "w2":
            for n in range(5):
                u = L + 64 * n
                p.add(self.calc(vR0, div(u, 40)))
                p.add(self.calc(vD[n], w(vR0) * 1280 + ((u - w(vR0) * 40) << 4)))
            p(f"""s_cmp_ge_u32 {sI}, 48
                  s_cselect_b32 {sC2}, 1, 0
                  s_mul_i32 {sK2}, {sC2}, 48
                  s_sub_u32 {sK2}, {sI}, {sK2}
                  s_mul_i32 {sS}, {sK2}, {32 * 1280}
                  s_mul_i32 {sD}, {sC2}, 640
                  s_add_u32 {sS}, {sS}, {sD}""")
            for n in range(20):
                p(f"s_add_u32 m0, {sM}, {n * 1024}")
                p(f"buffer_load_dwordx4 {vD[n % 5]}, {W2_}, {sS} offen lds")
                if n % 5 == 4:
                    p(f"s_add_u32 {sS}, {sS}, {8 * 1280}")
        else:
            p.add(self.calc(vD[0], (L >> 3) * 1280 + ((L & 7) << 4)))
            p(f"""s_and_b32 {sK2}, {sI}, 3
                  s_lshr_b32 {sC2}, {sI}, 2
                  s_mul_i32 {sS}, {sK2}, {160 * 1280}
                  s_lshl_b32 {sD}, {sC2}, 7
                  s_add_u32 {sS}, {sS}, {sD}""")
            for n in range(20):
                p(f"s_add_u32 m0, {sM}, {n * 1024}")
                p(f"buffer_load_dwordx4 {vD[0]}, {WO_}, {sS} offen lds")
                p(f"s_add_u32 {sS}, {sS}, {8 * 1280}")
        issue = p.release()
        p.capture()
        frs = []
        if kind == "w13":
            p.add(self.calc(vR1, ((g << 3) + r) * 384 + sM))
            p.add(self.calc(vR0, w(vR1) + (cq << 3)))
            p.add(self.calc(vR1, w(vR1) + 32 + ((cq & 1) << 3) + (cq >> 1) * 12304))
            p.add(self.calc(vD[0], ((L & 48) + ((L & 6) << 1) + ((L & 8) >> 2) + (L & 1)) << 4))
            p(f"""s_mul_i32 {sD}, {sC2}, {8 * 61440}
                  s_mul_i32 {sS}, {sK2}, 3072
                  s_add_u32 {sD}, {sD}, {sS}
                  s_add_u32 {sD}, {sD}, {W13P}""")
            for e in range(8):
                for T in range(3):
                    frs.append((vR1 if T == 2 else vR0, [hf * 4 * 384 + 48 * e + (12304 if T == 1 else 0) for hf in range(2)], e * 61440 + T * 1024))
        elif kind == "w2":
            p.add(self.calc(vR0, ((g << 3) + r) * 640 + (cq << 3) + sM))
            p(f"""s_mul_i32 {sD}, {sC2}, {4 * 245760}
                  s_mul_i32 {sS}, {sK2}, 5120
                  s_add_u32 {sD}, {sD}, {sS}
                  s_add_u32 {sD}, {sD}, {W2P}""")
            for e in range(4):
                for t in range(5):
                    frs.append((vR0, [hf * 4 * 640 + 160 * e + 32 * t for hf in range(2)], e * 245760 + t * 1024))
        else:
            p.add(self.calc(vR0, (((g << 2) + r) << 7) + (cq << 4) + sM))
            p.add(self.calc(vR1, ((r * 20 + 16 + g) << 7) + (cq << 4) + sM))
            p(f"""s_mul_i32 {sD}, {sC2}, {2 * 40960}
                  s_mul_i32 {sS}, {sK2}, 10240
                  s_add_u32 {sD}, {sD}, {sS}
                  s_add_u32 {sD}, {sD}, {WOP}""")
            for e in range(2):
                for f in range(5):
                    for u in range(2):
                        offs = [((2 * f + hf) * 20 if f < 4 else hf * 80) * 128 + 64 * e + 8 * u for hf in range(2)]
                        frs.append((vR0 if f < 4 else vR1, offs, e * 40960 + (2 * f + u) * 1024))
        if kind != "wo": p.add(self.stamp(6, 2))
        p.add(waitvm([x for x in issue if x.cls == "vm"][-1]))
        if kind != "wo": p.add(self.stamp(7, 2))
        pend, cur = [], 0
        for k, (a, offs, do) in enumerate(frs):
            for hf in range(2):
                p(f"ds_read_b64_tr_b16 {F[4 * k + 2 * hf: 4 * k + 2 * hf + 2]}, {a} offset:{offs[hf]}")
            pend.append((k, do))
            while pend and (len(pend) > 5 or k == len(frs) - 1):
                k2, d2 = pend.pop(0)
                if not 0 <= d2 - cur < 4096:
                    p(f"s_add_u32 {sD}, {sD}, {d2 - cur}"); cur = d2
                va = vD[0] if kind == "w13" and k2 % 3 == 2 else v16
                p(f"buffer_store_dwordx4 {F[4 * k2: 4 * k2 + 4]}, {va}, {WS_}, {sD} offen offset:{d2 - cur} sc1")
        return issue, p.release()

    def helper(self):
        p, c = self.p, self.c
        p(".RESET")
        sH, sU, sUn, sFl = sT[4], sT[5], sT[8], sT[9]
        vA, vB, vZ = V(10), V(11), V(12, 4)
        Xr = V(16, 40)
        junk = V(56)
        p(f"""s_lshl_b32 {sH}, {sCl}, 2
              s_add_u32 {sH}, {sH}, {sMem}
              s_sub_u32 {sH}, {sH}, 12""")
        p.add(self.calc(vA, (L >> 3) * 1280 + ((L & 7) << 4)))
        p(f"""s_lshl_b32 {sU}, {sH}, 2
              s_add_u32 {sU}, {sU}, {sWave}
              s_mul_i32 {sT[6]}, {sU}, {8 * 1280}
              s_lshl_b32 {sUn}, {sWave}, 6
              s_add_u32 {sUn}, {sUn}, {sH}
              s_waitcnt lgkmcnt(0)""")
        for i in range(10):
            p(f"buffer_load_dwordx4 {Xr[4 * i: 4 * i + 4]}, {vA}, {X_}, {sT[6]} offen offset:{128 * i}")
        p(f"v_lshlrev_b32 {v16}, 4, {vLane}")
        for srd, size in ((WQ_, 2457600), (WO_, 819200), (W1_, 1966080), (W3_, 1966080), (W2_, 1966080)):
            p(f"s_mov_b32 {srd[2]}, {size}\ns_mov_b32 {srd[3]}, 0x20000")
        p.add(self.late_srds())
        for srd, at in ((WO_, 80), (W1_, 84), (W3_, 86), (W2_, 88)):
            p(f"s_mov_b64 {srd[0:2]}, s[{at}:{at + 1}]")
        sX = sT[7]
        if c.mapA == 256:
            p(f"s_and_b32 {sX}, {sU}, 31")
        else:
            p(f"""s_lshr_b32 {sX}, s2, 6
                  s_lshl_b32 {sX}, {sX}, 1
                  s_bfe_u32 {sT[15]}, s2, 0x10003
                  s_add_u32 {sX}, {sX}, {sT[15]}
                  s_lshl_b32 {sX}, {sX}, 2
                  s_add_u32 {sX}, {sX}, {sWave}""")
        woi, wof = self.relay("wo", sH, 20480)
        p(f"""s_cmp_lt_u32 {sUn}, 192
              s_cbranch_scc1 Lnowo1
              s_cmp_ge_u32 {sUn}, 232
              s_cbranch_scc1 Lnowo1""")
        p.add([Ins(x.text) for x in woi])
        p("Lnowo1:\n.FORGET 20")
        for i in range(4):
            p(f"v_mov_b32 {vZ[i]}, 0")
        per = (ZEND - KVO) // 256
        p.add(self.calc(vB, sel(L.lt(per // 16), L << 4, OOB)))
        p(f"""s_mul_i32 {sT[15]}, {sU}, {per}
              s_add_u32 {sT[15]}, {sT[15]}, {KVO}
              buffer_store_dwordx4 {vZ}, {vB}, {WS_}, {sT[15]} offen sc1""")
        p(f"s_lshl_b32 {sT[15]}, {sU}, 12\ns_add_u32 {sT[15]}, {sT[15]}, {FLAGS}")
        for k in range(4):
            p(f"buffer_store_dwordx4 {vZ}, {v16}, {WS_}, {sT[15]} offen offset:{1024 * k} sc1")
        p(f"s_cmp_eq_u32 {sWave}, 3\ns_cselect_b32 {sT[15]}, 16, 8")
        p.add(self.calc(vB, sel(L.lt(sT[15]), ((L >> 3) << 13) + ((L & 7) << 4), OOB)))
        p(f"""s_lshl_b32 {sFl}, {sUn}, 7
              s_add_u32 {sFl}, {sFl}, {FW}
              buffer_store_dwordx4 {vZ}, {vB}, {WS_}, {sFl} offen sc1""")
        touches = []
        if c.touchW:
            vT, sK = V(57), sT[16]
            p.add(self.calc(vT, L * 3840))
            self.rotation(sK)
            if c.mapA == 256:
                p(f"""s_min_u32 {sT[17]}, {sX}, 29
                      s_lshl_b32 {sT[17]}, {sT[17]}, 7
                      s_add_u32 {sK}, {sK}, {c.touch0}""")
                step, cnt = 1, 10 - c.touch0
            else:
                p(f"""s_and_b32 {sT[17]}, {sX}, 15
                      s_min_u32 {sT[17]}, {sT[17]}, 14
                      s_mul_i32 {sT[18]}, {sT[17]}, 52
                      s_lshr_b32 {sT[18]}, {sT[18]}, 8
                      s_mul_i32 {sT[18]}, {sT[18]}, 5
                      s_add_u32 {sT[17]}, {sT[17]}, {sT[18]}
                      s_and_b32 {sT[18]}, s2, 1
                      s_mul_i32 {sT[18]}, {sT[18]}, 5
                      s_add_u32 {sT[17]}, {sT[17]}, {sT[18]}
                      s_lshl_b32 {sT[17]}, {sT[17]}, 7
                      s_lshr_b32 {sT[18]}, {sX}, 4
                      s_add_u32 {sK}, {sK}, {sT[18]}
                      s_add_u32 {sK}, {sK}, {c.touch0}""")
                step, cnt = 2, (11 - c.touch0) // 2
            for n in range(cnt):
                touches.append([I(f"s_cmp_ge_u32 {sK}, 10"), I(f"s_cselect_b32 {sT[18]}, 10, 0"), I(f"s_sub_u32 {sK}, {sK}, {sT[18]}"),
                                I(f"s_mul_i32 {sT[18]}, {sK}, {64 * 3840}"), I(f"s_add_u32 {sT[18]}, {sT[18]}, {sT[17]}"),
                                I(f"buffer_load_dword {V(170 + n)}, {vT}, {WQ_}, {sT[18]} offen"),
                                I(f"s_add_u32 {sK}, {sK}, {step}")])
            if c.mapA == 512:
                vP = V(58)
                p.add(self.calc(vP, (L >> 3) * 1280 + ((L & 7) << 7)))
                p(f"s_xor_b32 {sT[19]}, {sU}, 8\ns_mul_i32 {sT[19]}, {sT[19]}, {8 * 1280}")
                p.add(self.calc(V(59), sel((L & 7).lt(2), w(vP) + 1024, OOB)))
                touches.insert(1, [I(f"buffer_load_dword {V(181)}, {vP}, {X_}, {sT[19]} offen"),
                                   I(f"buffer_load_dword {V(182)}, {V(59)}, {X_}, {sT[19]} offen")])
        for _ in range(min(c.touchEarly, len(touches))):
            p.add(touches.pop(0))
        p.add(self.stamp(1, 2))
        s1, s2, t = V(60), V(61), V(62)
        p(f"v_mov_b32 {s1}, 0\nv_mov_b32 {s2}, 0\nv_mov_b32 {t}, 0x3f803f80")
        for i in range(40):
            p(f"v_dot2_f32_bf16 {s1}, {Xr[i]}, {t}, {s1}")
            p(f"v_dot2_f32_bf16 {s2}, {Xr[i]}, {Xr[i]}, {s2}")
        for mod in ("quad_perm:[1,0,3,2]", "quad_perm:[2,3,0,1]", "row_half_mirror"):
            p(f"v_add_f32_dpp {s1}, {s1}, {s1} {mod} row_mask:0xf bank_mask:0xf")
            p(f"v_add_f32_dpp {s2}, {s2}, {s2} {mod} row_mask:0xf bank_mask:0xf")
        p(f"""v_mul_f32 {s1}, {f32(-1.0 / 640)}, {s1}
              v_mul_f32 {s2}, {f32(1.0 / 640)}, {s2}
              v_fma_f32 {s2}, -{s1}, {s1}, {s2}
              v_max_f32 {s2}, 0, {s2}
              v_add_f32 {s2}, {f32(1e-5)}, {s2}
              v_rsq_f32 {s2}, {s2}""")
        p.add(self.calc(vB, sel((L & 7).lt(2), ((L & 7) << 13) + ((L >> 3) << 2), OOB)))
        p(f"""v_and_b32 {t}, 7, {vLane}
              v_cmp_eq_u32 vcc, 0, {t}
              v_cndmask_b32 {s1}, {s1}, {s2}, vcc
              s_lshl_b32 {sT[15]}, {sU}, 5""")
        p.add(self.stamp(2, 2))
        sst = p(f"buffer_store_dword {s1}, {vB}, {WS_}, {sT[15]} offen sc1")
        p(f"s_cmp_eq_u32 {sWave}, 0\ns_cselect_b32 {sT[15]}, 1, 0")
        p.add(self.calc(vB, sel(L.lt(sT[15]), 0, OOB)))
        p.add(self.calc(vA, sel(L.eq(0), 0, OOB)))
        p(f"v_mov_b32 {t}, 1\ns_lshl_b32 {sT[15]}, {sH}, 2")
        for g_ in touches:
            p.add(g_)
        ntouch = sum(x.cls == "vm" for g_ in touches for x in g_)
        p(f"s_cmp_ge_u32 {sUn}, 160\ns_cbranch_scc1 Lunit2")
        a, b = self.relay("w13", sUn, 0)
        cut = [k for k, x in enumerate(a) if x.cls == "vm"][c.hEarly] - 1
        p.add(a[:cut])
        p.add(waitvm(sst))
        p(f"s_barrier\nbuffer_store_dword {t}, {vB}, {DBG_}, {sT[15]} offen sc1")
        p.add(self.stamp(1)); p.add(self.stamp(3, 2)); p.add(self.stamp(4, 2))
        p.add(a[cut:]); p.add(b)
        p(f"""s_branch Lunitend
              Lunit2:
              .RESET
              s_waitcnt vmcnt({ntouch})
              s_barrier""")
        p.add(self.stamp(1)); p.add(self.stamp(3, 2))
        p(f"""s_cmp_lt_u32 {sUn}, 192
              s_cbranch_scc1 Lnowo2
              s_cmp_ge_u32 {sUn}, 232
              s_cbranch_scc1 Lnowo2""")
        p.add(wof)
        p(f"""s_add_u32 {sT[15]}, {sFl}, {64 * 128}
              s_waitcnt vmcnt(0)
              buffer_store_dword {t}, {vA}, {WS_}, {sT[15]} offen sc1
              Lnowo2:
              .RESET
              s_sub_u32 {sUn}, {sUn}, 160""")
        p.add(self.stamp(4, 2))
        a, b = self.relay("w2", sUn, 0)
        p.add(a); p.add(b)
        p("Lunitend:")
        p.add(self.stamp(8, 2))
        p(f"""s_waitcnt vmcnt(0)
              buffer_store_dword {t}, {vA}, {WS_}, {sFl} offen sc1""")
        p.add(self.stamp(2)); p.add(self.stamp(9, 2))
        self.setupBCD()
        p.add(self.calc(vA, L << 2))
        ld, chk = self.poll(vB, vA, DBG_, 0, 1)
        p.add(ld); p.add(chk)
        p.add(self.lines(vA, 4))
        ld, chk = self.poll(vB, vA, WS_, sFWo, 1, 0xf)
        p.add(ld); p.add(chk)
        p.add(self.stamp(3))
        p("s_barrier")
        self.tailA(self.wo_groups(), V(250), V(251), [])

    def phaseB(self):
        p, c = self.p, self.c
        sU, sTile, sML, sPQ = sT[7], sT[11], sT[10], sT[9]
        v8, vF, vFA, vOW, vSA, vFO, vEA, vMB, vEB = [V(10 + i) for i in range(9)]
        CS, EPS, XR = V(20, 12), V(32, 4), V(36, 12)
        PQr = [V(48, 24), V(72, 24), V(48, 24)]
        FA = [V(96 + 4 * hh, 4) for hh in range(8)]
        FBk = [V(128 + 6 * a, 6) for a in range(4)]
        EA, EB = [V(160, 4), V(152, 4)], [V(164, 4), V(156, 4)]
        acc, H, OF4, s1, s2, ones = V(152, 8), V(160, 4), V(164, 4), V(2), V(3), V(4, 4)
        DA = [V(168 + 8 * a, 8) for a in range(4)]
        DB = [V(200 + 8 * a, 8) for a in range(4)]
        OR_ = [V(232 + 4 * j, 4) for j in range(6)]
        MK = [Reg("s", r, 2) for r in (44, 46, 60, 62)]
        p.add(self.stamp(4))
        for n in range(c.w13A, 24):
            p.add(self.wload(W13R[n], sW13p, n))
        p(f"s_mul_i32 {sML}, {sWave}, {PARKW}")
        park = lambda: [self.wdma(sML, PARK + 1024 * k, sW13p, 24 + k) for k in range(24)]
        latew = lambda: [self.wload(W13R[n], sW13p, n) for n in range(48, 60)]
        cs24 = lambda: ([I(f"v_mov_b32 {ones[i]}, 0x3f803f80") for i in range(4)] +
                        [mfma(CS[4 * T: 4 * T + 4], W13R[3 * ks + T], ones, "0" if ks == 0 else CS[4 * T: 4 * T + 4])
                         for T in range(3) for ks in range(8)])
        p(f"s_cmp_eq_u32 {sMemB}, 15\ns_cbranch_scc1 LidleB")
        p.add(self.calc(v8, L << 3))
        p.add(self.lines(vFA, 4))
        p(f"""s_lshl_b32 {sU}, {sClB}, 2
              s_add_u32 {sU}, {sU}, {sWave}
              s_lshl_b32 {sU}, {sU}, 9
              s_add_u32 {sT[12]}, {sU}, {FPQ}""")
        ld, chk = self.poll(vF, vFA, WS_, sT[12], 1, 0xf)
        p.add(ld)
        p(f"""s_lshl_b32 {sTile}, {sClB}, 3
              s_add_u32 {sTile}, {sTile}, {sTg}
              s_lshl_b32 {sU}, {sCg}, 8
              s_lshl_b32 {sT[13]}, {sWave}, 6
              s_add_u32 {sU}, {sU}, {sT[13]}""")
        p.add(self.calc(vEA, T16 * 1280 + (G4 << 4) + sU))
        p(f"s_mul_i32 {sU}, {sTile}, {16 * 1280}")
        for i in range(3):
            p(f"buffer_load_dwordx4 {XR[4 * i: 4 * i + 4]}, {vEA}, {X_}, {sU} offen")
            p(f"s_add_u32 {sU}, {sU}, {48 * 1280}")
        wq = park()
        take = lambda n: [x for _ in range(min(n, len(wq))) for x in wq.pop(0)]
        p.add(take(c.nPre0))
        p.add(self.calc(vEB, sel((L & 1).eq(0), (T16 >> 2) << 4, 64) + 1280))
        p.add(self.calc(vMB, ((L >> 1) & 1) * 1792 + G4 * 80 + w(vEB)))
        p.add(self.calc(vEB, G4 * 1792 + 320 + w(vEB)))
        p.add(self.calc(vEA, G4 * 1792 + 1024 + (T16 << 4)))
        for j in range(4):
            p(f"s_bfm_b64 {MK[j]}, 16, {16 * j}")
        p(f"v_mov_b32 {EPS[0]}, 0\nv_mov_b32 {EPS[1]}, {f32(1e-6)}\nv_mov_b32 {EPS[2]}, 0\nv_mov_b32 {EPS[3]}, {f32(1e-6)}")
        p(f"s_mul_i32 {sU}, {sWave}, 5120")
        p.add(self.calc(vOW, w(v16) + sU))
        p.add(self.calc(vSA, sel((L & 16).eq(0), (T16 << 3) + ((L >> 5) << 2), OOB)))
        p.add(self.calc(vFO, sel(L.eq(0), 0, OOB)))
        p(f"""s_lshl_b32 {sPQ}, {sTile}, 2
              s_add_u32 {sPQ}, {sPQ}, {sWave}
              s_mul_i32 {sPQ}, {sPQ}, 5120
              s_add_u32 {sPQ}, {sPQ}, {PQ}""")
        def pqload(i):
            o = [I(f"s_cmp_eq_u32 {sTg}, 2"), I(f"s_cselect_b32 {sPQ}, {OOB}, {sPQ}")] if i == 2 else []
            for hn in range(2):
                r = PQr[i][12 * hn: 12 * hn + 12]
                o += [I(f"buffer_load_dwordx4 {r[0:4]}, {v16}, {WS_}, {sPQ} offen sc1"),
                      I(f"buffer_load_dwordx4 {r[4:8]}, {v16}, {WS_}, {sPQ} offen offset:1024 sc1"),
                      I(f"buffer_load_dwordx2 {r[10:12]}, {v8}, {WS_}, {sPQ} offen offset:2048 sc1"),
                      I(f"s_add_u32 {sPQ}, {sPQ}, {2560 if hn == 0 else 3 * 8 * 2560 - 2560}")]
            return glue(o)
        pqdup = lambda i: [I(f"v_mov_b32 {PQr[i][12 * hn + 8 + j]}, {PQr[i][12 * hn + 2 + j]}") for hn in range(2) for j in range(2)]
        p.add(chk)
        p.add(pqload(0)); p.add(pqload(1))
        p.add(take(c.nPre))
        p.add(self.lines(vFA, 32))
        sHO, sSO, sFO, sKF = sT[12], sT[13], sT[14], sT[15]
        p(f"""s_and_b32 {sU}, s2, 7
              s_lshl_b32 {sU}, {sU}, 14
              s_lshl_b32 {sKF}, {sWave}, 12
              s_add_u32 {sKF}, {sKF}, {sU}
              s_add_u32 {sKF}, {sKF}, {FKV}""")
        ld, chk = self.poll(vF, vFA, WS_, sKF, 1, 0xffffffff)
        p(f"""s_mul_i32 {sHO}, {sTile}, 20
              s_lshl_b32 {sU}, {sCg}, 2
              s_add_u32 {sHO}, {sHO}, {sU}
              s_add_u32 {sHO}, {sHO}, {sWave}
              s_lshl_b32 {sHO}, {sHO}, 10
              s_add_u32 {sHO}, {sHO}, {HB}
              s_lshl_b32 {sSO}, {sTile}, 7
              s_add_u32 {sSO}, {sSO}, {HST}
              s_lshl_b32 {sFO}, {sClB}, 4
              s_add_u32 {sFO}, {sFO}, {sMemB}
              s_lshl_b32 {sFO}, {sFO}, 9
              s_mul_i32 {sU}, {sWave}, 128
              s_add_u32 {sFO}, {sFO}, {sU}
              s_add_u32 {sFO}, {sFO}, {FH}
              s_mul_i32 {sU}, {sWave}, {8 * 1792}
              s_add_u32 {sU}, {sU}, {KVO}""")
        p.add(self.stamp(5))
        p.add(ld)
        p.add(cs24())
        p.add(pqdup(0) + pqdup(1))
        p.add(chk)
        p.add(self.stamp(6))
        for hf in range(2):
            p(f"""buffer_load_dwordx4 {EB[hf]}, {vEB}, {WS_}, {sU} offen sc1
                  buffer_load_dwordx4 {EA[hf]}, {vEA}, {WS_}, {sU} offen sc1""")
            for a in (2 * hf, 2 * hf + 1):
                p(f"""buffer_load_dwordx4 {FBk[a][0:4]}, {vMB}, {WS_}, {sU} offen sc1
                      buffer_load_dwordx4 {FA[2 * a]}, {v16}, {WS_}, {sU} offen sc1
                      buffer_load_dwordx4 {FA[2 * a + 1]}, {v16}, {WS_}, {sU} offen offset:1792 sc1
                      s_add_u32 {sU}, {sU}, {2 * 1792}""")
        p.add(take(c.nKV))
        cv = lambda d, x, y: I(f"v_cvt_pk_bf16_f32 {d}, {x}, {y}")
        def prep(a):
            hf, j0 = a >> 1, 2 * (a & 1)
            o = []
            if a & 1 == 0:
                for E_ in (EB[hf], EA[hf]):
                    o += [cv(E_[0], E_[0], E_[1]), cv(E_[1], E_[2], E_[3])]
            b, e, d = FBk[a], FA[2 * a], FA[2 * a + 1]
            mask = lambda dst, E_, j: [I(f"v_cndmask_b32 {dst[k]}, 0, {E_[k]}, {MK[j]}") for k in range(2)]
            o += [cv(b[3], b[2], b[3]), cv(b[2], b[0], b[1])] + mask(b[0:2], EB[hf], j0 + 1) + mask(b[4:6], EB[hf], j0)
            o += [cv(e[0], e[0], e[1]), cv(e[1], e[2], e[3])] + mask(e[2:4], EA[hf], j0)
            o += [cv(d[3], d[2], d[3]), cv(d[2], d[0], d[1])] + mask(d[0:2], EA[hf], j0 + 1)
            return o
        def omf(i, a):
            we, wo_ = PQr[i][6 * a: 6 * a + 4], PQr[i][6 * a + 2: 6 * a + 6]
            return [mfma(DB[a][0:4], FBk[a][2:6], we, EPS), mfma(DB[a][4:8], FBk[a][0:4], wo_, EPS),
                    mfma(DA[a][0:4], FA[2 * a], we, "0"), mfma(DA[a][4:8], FA[2 * a + 1], wo_, "0")]
        def ova(i, a):
            d, b, ob = DA[a], DB[a], (i & 1) * 20480
            o = [I(f"v_rcp_f32 {b[1]}, {b[1]}"), I(f"v_rcp_f32 {b[7]}, {b[7]}")]
            for e in range(2):
                for j in range(4):
                    o.append(I(f"v_mul_f32 {d[4 * e + j]}, {b[1 + 6 * e]}, {d[4 * e + j]}"))
                o.append(I(f"v_mul_f32 {b[6 * e]}, {b[1 + 6 * e]}, {b[6 * e]}"))
            for j in range(4):
                o.append(cv(d[j], d[2 * j], d[2 * j + 1]))
            o.append(cv(OF4[a], b[0], b[6]))
            o.append(I(f"ds_write_b128 {vOW}, {d[0:4]} offset:{ob + 1024 * a}"))
            if a == 3:
                o.append(I(f"ds_write_b128 {vOW}, {OF4} offset:{ob + 4096}"))
            return o
        def unpack(i):
            o = []
            for j in range(4):
                o.append(I(f"v_lshlrev_b32 {acc[2 * j]}, 16, {XR[4 * i + j]}"))
                o.append(I(f"v_and_b32 {acc[2 * j + 1]}, 0xffff0000, {XR[4 * i + j]}"))
            return o
        p.add(prep(0))
        for a in range(4):
            fill = (ova(0, a - 1) if a else []) + (prep(a + 1) if a < 3 else unpack(0))
            if a == 1:
                fill = prep(2)[:6] + ova(0, 0) + prep(2)[6:]
            p.add(weave(omf(0, a), [fill]))
        p.add(ova(0, 3))
        p.add(self.stamp(7))
        pend = None
        p(f"v_mov_b32 {vF}, 1")
        flag = lambda i, tok: [waitvm(tok), I(f"buffer_store_dword {vF}, {vFO}, {WS_}, {sFO} offen sc1"),
                               I(f"s_add_u32 {sFO}, {sFO}, {FRND}")]
        for i in range(3):
            if i == 2:
                p(f"s_cmp_eq_u32 {sTg}, 2\ns_cbranch_scc1 LshortB")
            ob = (i & 1) * 20480
            nx = [m for a in range(4) for m in omf(i + 1, a)] if i < 2 else []
            if i == 1:
                p.add(pqdup(2))
            p.add(nx[:8])
            p("s_waitcnt lgkmcnt(0)\ns_barrier")
            rd = [I(f"ds_read_b128 {OR_[ks % 6]}, {v16} offset:{ob + 1024 * ks}") for ks in range(20)]
            p.add(weave(nx[8:], [rd[:6]]) if nx else rd[:6])
            mf = []
            for kp in range(10):
                for u in range(2):
                    for e in range(2):
                        ks = 2 * kp + e
                        mf.append(after(mfma(acc[4 * u: 4 * u + 4], A((ks * 2 + u) * 4, 4), OR_[ks % 6], acc[4 * u: 4 * u + 4]), rd[ks]))
                        if u == 1 and ks + 6 < 20:
                            after(rd[ks + 6], mf[-1])
            va = Pool([x for a in range(4) for x in ova(i + 1, a)]) if i < 2 else []
            fl = [(x, c.bflag) for x in flag(i - 1, pend)] if i else []
            if i == 0:
                dm = spread(pqload(2) + take(c.nB0), 0, 30)
            elif i == 1:
                dm = spread(take(24), 0, 36)
            else:
                dm = spread([x for g_ in latew() for x in g_], 12, 38)
            body, left = weave(mf, [rd[6:], fl, dm, va], keep=True)
            p.add(body)
            p.add(left[1]); p.add(left[2]); p.add(left[3][:8])
            for j in range(4):
                p.add(cv(H[j], acc[2 * j], acc[2 * j + 1]))
            p(f"buffer_store_dwordx4 {H}, {v16}, {WS_}, {sHO} offen sc1")
            p(f"v_add_f32 {s1}, {acc[0]}, {acc[1]}\nv_mul_f32 {s2}, {acc[0]}, {acc[0]}\nv_fmac_f32 {s2}, {acc[1]}, {acc[1]}")
            for j in range(2, 8):
                p(f"v_add_f32 {s1}, {s1}, {acc[j]}\nv_fmac_f32 {s2}, {acc[j]}, {acc[j]}")
            p(f"""s_add_u32 {sHO}, {sHO}, {3 * 20480}
                  v_permlane32_swap_b32 {s1}, {s2}
                  v_add_f32 {s1}, {s1}, {s2}
                  v_mov_b32 {s2}, {s1}
                  v_permlane16_swap_b32 {s1}, {s2}
                  v_add_f32 {s1}, {s1}, {s2}""")
            pend = p(f"buffer_atomic_add_f32 {s1}, {vSA}, {WS_}, {sSO} offen")
            p(f"s_add_u32 {sSO}, {sSO}, {3 * 128}")
            p.add(left[3][8:])
            if i < 2:
                p.add(unpack(i + 1))
            if i == 0:
                p.add(self.stamp(8))
        p(f"""s_branch LendB
              LidleB:
              .RESET
              s_mov_b32 {sFO}, {OOB}
              v_mov_b32 {vFO}, 0""")
        p.add(park())
        p("s_waitcnt vmcnt(24)")
        p.add(cs24())
        p("LshortB:\n.RESET")
        p.add(latew())
        p("LendB:")
        self.Bflag = (vFO, sFO)

    def phaseCD(self):
        p, c = self.p, self.c
        W13 = [[W13R[ks * 3 + T] for T in range(3)] for ks in range(20)]
        vBF, sBF = self.Bflag
        vF, vFA, vSA, vEW, vEW2 = V(10), V(11), V(12), V(13), V(14)
        vFO = V(15)
        vER, vGA, vOne, vLW = V(16), V(17), V(18), V(19)
        CS = V(20, 12)
        acc = [V(32, 12), V(44, 12)]
        HF = [V(56 + 4 * i, 4) for i in range(8)]
        SQ = V(88, 4)
        mean, ve, ke = V(92), V(93), V(94)
        vFD = V(95)
        Tm, HO, vSR = V(96, 6), V(102, 3), V(105)
        vPW, vPR, vRA, vOA, vFAD, vX = [V(106 + i) for i in range(6)]
        ones = V(96, 4)
        slot = lambda i: ((i + 2) % 3) * 20480
        sU, sHS, sMH, sSS, sGO, sFO, sML = sT[4], sT[5], sT[6], sT[7], sT[8], sT[9], sT[10]
        sP = sT[11]
        p.add(self.calc(vFA, sel((L & 7).lt(5), sel(L.lt(24), ((L >> 3) * 20 + (L & 7)) << 7, OOB), OOB)))
        p(f"""s_lshl_b32 {sP}, {sClC}, 13
              s_mul_i32 {sU}, {sWave}, 640
              s_add_u32 {sP}, {sP}, {sU}
              s_add_u32 {sP}, {sP}, {FH}""")
        polls = {i: self.poll(vF, vFA, WS_, sP, 1, 0x1f << (8 * i)) for i in range(3)}
        polls[3] = self.poll(vF, vFA, WS_, sT[12], 1, 0x1f1f1f)
        polls[6] = self.poll(vF, vFA, WS_, sT[13], 1, 0x1f1f)
        p.add(polls[0][0])
        p(f"""s_mul_i32 {sHS}, {sClC}, {8 * 20480}
              s_mul_i32 {sMH}, {sWave}, 5120
              s_add_u32 {sHS}, {sHS}, {sMH}
              s_add_u32 {sHS}, {sHS}, {HB}
              s_add_u32 {sT[12]}, {sP}, {FRND}
              s_add_u32 {sT[13]}, {sP}, {2 * FRND}
              v_mov_b32 {vOne}, 1""")
        p.add(self.calc(vLW, w(v16) + sML + PARK))
        p.add(self.lines(vX, 12))
        for i in range(4):
            p(f"v_mov_b32 {ones[i]}, 0x3f803f80")
        last = {}
        def dma(i):
            o = [[I(f"s_add_u32 m0, {sMH}, {slot(i)}"),
                  I(f"buffer_load_dwordx4 {v16}, {WS_}, {sHS} offen offset:{1024 * n} sc1 lds")] for n in range(4)]
            o[3].append(I(f"s_add_u32 {sHS}, {sHS}, 4096"))
            o.append([I(f"s_add_u32 m0, {sMH}, {slot(i) + 4096}"),
                      I(f"buffer_load_dwordx4 {v16}, {WS_}, {sHS} offen sc1 lds"), I(f"s_add_u32 {sHS}, {sHS}, {20480 - 4096}")])
            last[i] = o[4][1]
            return o
        w2ld, w2chk = self.poll(vFD, vX, WS_, sFW2, 1, 0xfff)
        p.add(w2ld)
        W2R = [V(112 + 4 * n, 4) if n < 36 else A(144 + 4 * (n - 36), 4) if n < 40 else A(48 + 4 * (n - 40), 4) for n in range(60)]
        w2q = [self.wload(W2R[n], sW2p, n) for n in range(40)] + [self.wdma(sML, PARK + 1024 * k, sW2p, 40 + k) for k in range(20)]
        w2last = [x for x in w2q[-1] if x.cls == "vm"][0]
        takew = lambda n: [w2q.pop(0) for _ in range(n)]
        p("s_waitcnt lgkmcnt(0)\ns_barrier")
        p.add(self.stamp(9))
        p.add(waitvm(polls[0][0]))
        p(f"buffer_store_dword {vOne}, {vBF}, {WS_}, {sBF} offen sc1")
        rl = [I(f"ds_read_b128 {W13R[24 + k]}, {vLW} offset:{1024 * k}") for k in range(24)]
        p.add(polls[0][1])
        p.add(self.stamp(10))
        p.add(dma(0))
        p.add(rl[:12])
        cm = []
        for lo, hi in ((16, 20), (8, 12), (12, 16)):
            for T in range(3):
                for ks in range(lo, hi):
                    cm.append(mfma(CS[4 * T: 4 * T + 4], W13[ks][T], ones, CS[4 * T: 4 * T + 4]))
                    if 24 <= 3 * ks + T < 48:
                        after(cm[-1], rl[3 * ks + T - 24])
        p.capture()
        p.add(self.calc(vSA, L << 3))
        p.add(self.calc(vSR, (T16 << 4) + sML + (PARK + 21504)))
        p.add(self.calc(vER, T16 * 48 + sML + (PARK + 20480)))
        p.add(self.calc(vEW, w(vER) + (G4 << 3)))
        p.add(self.calc(vEW2, w(vER) + 32 + (G4 << 2)))
        p.add(self.calc(vER, w(vER) + (vmin(G4, 2) << 4)))
        p.add(self.calc(vGA, sel(L.lt(48), w(v16), OOB)))
        p.add(self.calc(vFO, sel(L.eq(0), 0, OOB)))
        p(f"""s_lshl_b32 {sSS}, {sClC}, 10
              s_add_u32 {sSS}, {sSS}, {HST}
              s_mul_i32 {sGO}, {sClC}, {8 * 64}
              s_lshl_b32 {sU}, {sMemC}, 2
              s_add_u32 {sGO}, {sGO}, {sU}
              s_add_u32 {sGO}, {sGO}, {sWave}
              s_mul_i32 {sGO}, {sGO}, 768
              s_add_u32 {sGO}, {sGO}, {HH}
              s_lshl_b32 {sFO}, {sClC}, 4
              s_add_u32 {sFO}, {sFO}, {sMemC}
              s_lshl_b32 {sFO}, {sFO}, 9
              s_mul_i32 {sU}, {sWave}, 128
              s_add_u32 {sFO}, {sFO}, {sU}
              s_add_u32 {sFO}, {sFO}, {FHH}""")
        setup = glue(p.release())
        flat = lambda gs: [x for g_ in gs for x in g_]
        mem = polls[1][1] + flat(dma(1)) + w2chk + flat(takew(c.w2pre)) + polls[2][1] + flat(dma(2))
        p.add(weave(cm, [rl[12:], spread(mem, 2, 30), setup]))
        p.add(waitvm(last[0]))
        p("s_barrier")
        p.add(self.stamp(11))
        p.capture()
        sCt, sPar, sDS, sDF, sRO, sOO = "s28", "s29", "s30", "s31", "s12", "s13"
        sW = [sT[16], sT[17], sT[18], sT[19]]
        RS, PB = 336, 5376
        p(f"s_and_b32 {sCt}, {sMemB}, 7\ns_lshr_b32 {sPar}, {sMemB}, 3")
        p.add(self.lines(vFAD, 16))
        p(f"s_mul_i32 {sU}, {sWave}, {PB}")
        p.add(self.calc(vPW, T16 * RS + (G4 << 4) + sU))
        p.add(self.calc(mean, div(L, 10)))
        p.add(self.calc(ve, L - w(mean) * 10))
        p(f"s_lshl_b32 {sU}, {sWave}, 2")
        p.add(self.calc(mean, vmin(w(mean), 3) + sU))
        p.add(self.calc(vPR, w(mean) * RS + (w(ve) << 5)))
        p(f"s_mul_i32 {sU}, {sCt}, 10")
        p.add(self.calc(ve, w(ve) + sU))
        p.add(self.calc(vRA, sel(L.lt(40), (w(ve) << 8) + (w(mean) << 4), OOB)))
        p.add(self.calc(vOA, sel(L.lt(40), w(mean) * 1280 + (w(ve) << 4), OOB)))
        p(f"""s_lshl_b32 {sU}, {sClB}, 3
              s_add_u32 {sU}, {sU}, {sPar}
              s_mul_i32 {sOO}, {sU}, 20480
              s_add_u32 {sRO}, {sOO}, {HB}
              s_mul_i32 {sDS}, {sU}, 48
              s_mul_i32 {sU}, {sWave}, 12
              s_add_u32 {sDS}, {sDS}, {sU}
              s_lshl_b32 {sDS}, {sDS}, 10
              s_add_u32 {sDS}, {sDS}, {HH}
              s_lshl_b32 {sDF}, {sClB}, 2
              s_add_u32 {sDF}, {sDF}, {sWave}
              s_lshl_b32 {sDF}, {sDF}, 11
              s_add_u32 {sDF}, {sDF}, {FHH}""")
        p(f"""s_add_u32 {sW[0]}, {sDF}, {FRND}
              s_add_u32 {sW[1]}, {sDF}, {2 * FRND}
              s_add_u32 {sW[2]}, {sDS}, {4 * 49152}
              s_add_u32 {sW[3]}, {sDS}, {6 * 49152}""")
        p.add(self.calc(vX, sel(L.lt(16), L * 768 + 764, OOB)))
        setupD = glue(p.release())
        EX = V(2, 4)

        def stats(r):
            q = SQ
            return (I(f"buffer_load_dwordx2 {q[0:2]}, {vSA}, {WS_}, {sSS} offen offset:{384 * r} sc1"),
                    [I(f"v_mul_f32 {q[0]}, {f32(-1.0 / 640)}, {q[0]}"),
                     I(f"v_mul_f32 {q[1]}, {f32(1.0 / 640)}, {q[1]}"),
                     I(f"v_fma_f32 {q[1]}, -{q[0]}, {q[0]}, {q[1]}"),
                     I(f"v_max_f32 {q[1]}, 0, {q[1]}"),
                     I(f"v_add_f32 {q[1]}, {f32(1e-5)}, {q[1]}"),
                     I(f"v_rsq_f32 {q[2]}, {q[1]}"),
                     I(f"v_mul_f32 {q[2]}, {f32(-LOG2E)}, {q[2]}"),
                     I(f"ds_write_b128 {vLW}, {q} offset:{21504 + 1024 * (r & 1)}")])
        def epi(i):
            a = acc[i & 1]
            o = [I(f"ds_read_b96 {V(92, 3)}, {vSR} offset:{1024 * ((i // 3) & 1) + 256 * (i % 3)}")]
            head = len(o)
            pairs = [(0, 4), (1, 5), (2, 6), (3, 7), (8, 10), (9, 11)]
            for k, (gi, ui) in enumerate(pairs):
                o += [I(f"v_fmac_f32 {a[gi]}, {mean}, {CS[gi]}"), I(f"v_mul_f32 {Tm[k]}, {ke}, {a[gi]}"),
                      I(f"v_exp_f32 {Tm[k]}, {Tm[k]}"), I(f"v_fmac_f32 {a[ui]}, {mean}, {CS[ui]}"),
                      I(f"v_fma_f32 {Tm[k]}, {Tm[k]}, {ve}, {ve}"), I(f"v_rcp_f32 {Tm[k]}, {Tm[k]}"),
                      I(f"v_mul_f32 {a[gi]}, {a[gi]}, {a[ui]}"), I(f"v_mul_f32 {Tm[k]}, {Tm[k]}, {a[gi]}")]
                if k & 1:
                    o.append(I(f"v_cvt_pk_bf16_f32 {HO[k >> 1]}, {Tm[k - 1]}, {Tm[k]}"))
                if k == 3:
                    o.append(I(f"ds_write_b64 {vEW}, {HO[0:2]}"))
            o.append(I(f"ds_write_b32 {vEW2}, {HO[2]}"))
            o.append(I(f"ds_read_b128 {EX}, {vER}"))
            return o[:head], o[head:]
        w2rd = [I(f"ds_read_b128 {W2R[40 + k]}, {vLW} offset:{1024 * k}") for k in range(20)]
        DH = [A(160, 48), A(208, 48)]
        dacc = [A(0, 20), A(20, 20)]
        RES, PR, O = V(32, 8), V(56, 32), V(40, 4)
        dpoll = {0: self.poll(vFD, vFAD, WS_, sDF, 1, 0xffff), 1: self.poll(vFD, vFAD, WS_, sW[0], 1, 0xffff),
                 2: self.poll(vFD, vX, WS_, sW[2], -1, 0xffff), 3: self.poll(vFD, vX, WS_, sW[3], -1, 0xffff)}
        def redo(i):
            self.nlab += 1
            k = self.nlab
            q = Prog()
            q(f"""Lslow{k}:
                  s_nop 7
                  s_cmp_eq_u32 {sSpin}, 0
                  s_cbranch_scc1 Lback{k}
                  s_sub_u32 {sSpin}, {sSpin}, 1
                  buffer_load_dword {ke}, {vFAD}, {WS_}, {sW[1]} offen sc1
                  v_cmp_gt_u32 vcc, 1, {ke}
                  s_and_b32 vcc_lo, vcc_lo, 0xffff
                  s_cbranch_scc1 Lslow{k}""")
            for ks in range(12):
                q(f"buffer_load_dwordx4 {DH[i & 1][4 * ks: 4 * ks + 4]}, {v16}, {WS_}, {sW[i]} offen offset:{1024 * (ks & 3)} sc1")
                if ks & 3 == 3:
                    q(f"s_add_u32 {sW[i]}, {sW[i]}, 4096")
            for ks in range(12):
                for ct in range(5):
                    d = dacc[i & 1][4 * ct: 4 * ct + 4]
                    q.add(mfma(d, W2R[5 * ks + ct], DH[i & 1][4 * ks: 4 * ks + 4], "0" if ks == 0 else d))
            q(f"s_nop 7\ns_branch Lback{k}")
            self.slow.append(q.finish())
            return glue([I(f"v_accvgpr_read_b32 {ke}, {dacc[i & 1][0]}"), I(f"v_cmp_u_f32 vcc, {ke}, {ke}"),
                         I(f"s_cbranch_vccnz Lslow{k}"), I(f"Lback{k}:")])
        def dload(i):
            o = []
            for ks in range(12):
                o.append([I(f"buffer_load_dwordx4 {DH[i & 1][4 * ks: 4 * ks + 4]}, {v16}, {WS_}, {sDS} offen offset:{1024 * (ks & 3)} sc1")])
                if ks & 3 == 3:
                    o[-1].append(I(f"s_add_u32 {sDS}, {sDS}, {4096 if ks < 11 else 96 * 1024 - 8192}"))
            return o
        rload = lambda i: [I(f"buffer_load_dwordx4 {RES[4 * (i & 1): 4 * (i & 1) + 4]}, {vRA}, {WS_}, {sRO} offen sc1"),
                           I(f"s_add_u32 {sRO}, {sRO}, {2 * 20480}")]
        wr = lambda i: [I(f"ds_write_b128 {vPW}, {dacc[i & 1][4 * ct: 4 * ct + 4]} offset:{(i & 1) * 4 * PB + 64 * ct}") for ct in range(5)]
        def fin(i, pk):
            o = []
            R_ = RES[4 * (i & 1): 4 * (i & 1) + 4]
            for s in range(4):
                for h in range(2):
                    o.append(I(f"ds_read_b128 {PR[8 * s + 4 * h: 8 * s + 4 * h + 4]}, {vPR} offset:{(i & 1) * 4 * PB + s * PB + 16 * h}"))
            for j in range(4):
                o.append(I(f"v_lshlrev_b32 {O[j]}, 16, {R_[j]}"))
                o.append(I(f"v_and_b32 {R_[j]}, 0xffff0000, {R_[j]}"))
            for j in range(8):
                o.append(I(f"v_add_f32 {PR[j]}, {PR[j]}, {O[j >> 1] if j % 2 == 0 else R_[j >> 1]}"))
            for s in range(1, 4):
                if pk:
                    o += [I(f"v_pk_add_f32 {PR[j: j + 2]}, {PR[j: j + 2]}, {PR[8 * s + j: 8 * s + j + 2]}") for j in range(0, 8, 2)]
                else:
                    o += [I(f"v_add_f32 {PR[j]}, {PR[j]}, {PR[8 * s + j]}") for j in range(8)]
            for j in range(4):
                o.append(I(f"v_cvt_pk_bf16_f32 {O[j]}, {PR[2 * j]}, {PR[2 * j + 1]}"))
            o.append(I(f"buffer_store_dwordx4 {O}, {vOA}, {OUT_}, {sOO} offen{' sc1' if c.outsc1 else ''}"))
            o.append(I(f"s_add_u32 {sOO}, {sOO}, {2 * 20480}"))
            return o

        def pace(groups, g0, g1):
            o = []
            for k, g_ in enumerate(groups):
                g = g0 + (g1 - g0) * k // max(len(groups), 1)
                o += [(x, g - 1 if x.scalar and j == 0 else g) for j, x in enumerate(g_)]
            return o

        mf, sS, sR, sPub, sFl, sM, sE = [], [], [], [], [], [], Pool()
        rd = {f: I(f"ds_read_b128 {HF[f % 8]}, {v16} offset:{slot(f // 20) + 1024 * (f % 20)}") for f in range(160)}
        lastuse = {}
        for i in range(8):
            for kp in range(10):
                for T in range(3):
                    for e in range(2):
                        ks = 2 * kp + e
                        d = acc[i & 1][4 * T: 4 * T + 4]
                        mf.append(after(mfma(d, W13[ks][T], HF[(20 * i + ks) % 8], "0" if ks == 0 else d), rd[20 * i + ks]))
                        if T == 2 and 20 * i + ks + 8 < 160:
                            after(rd[20 * i + ks + 8], mf[-1])
                        lastuse[str(W13[ks][T])] = mf[-1]
        dl = {i: dload(i) for i in range(4)}
        for i in range(4):
            for kp in range(6):
                for ct in range(5):
                    for e in range(2):
                        ks = 2 * kp + e
                        d = dacc[i & 1][4 * ct: 4 * ct + 4]
                        n = ks * 5 + ct
                        mf.append(after(mfma(d, W2R[n], DH[i & 1][4 * ks: 4 * ks + 4], "0" if ks == 0 else d),
                                        dl[i][ks][0], w2rd[n - 40] if n >= 40 else w2last))
                        if ct == 4 and i < 2:
                            after(dl[i + 2][ks][0], mf[-1])
        for i in range(2):
            for ks in range(12):
                after(dl[i][ks][0], lastuse[str(DH[i][4 * ks: 4 * ks + 4])])
        for k in range(20):
            after(w2rd[k], lastuse[str(W2R[40 + k])])
        p.add([rd[f] for f in range(8)])
        B = c.cbar
        nw = list(c.w2n)
        assert sum(nw) + c.w2pre == 60
        sE += setupD
        fill = [I(f"v_mov_b32 {Tm[k]}, -1") for k in range(4)] + [I(f"s_add_u32 {sT[15]}, {sGO}, {4 * 49152}")]
        for k in range(4):
            fill += [(I(f"buffer_store_dwordx4 {Tm[0:4]}, {vGA}, {WS_}, {sT[15]} offen sc1"), 10 + 10 * k),
                     I(f"s_add_u32 {sT[15]}, {sT[15]}, 49152")]
        sPub += fill
        stl = {r: stats(r) for r in range(3)}
        sM += [(polls[3][0], c.cpoll), stl[0][0]] + pace(takew(nw[0]), 8, B)
        stores = {}
        for i in range(8):
            G = 60 * i
            sS += [(x, G) for x in self.stamp(1 + i, 3)]
            sR += [rd[f] for f in range(20 * i + (8 if i == 0 else 0), 20 * i + 20)]
            bar = I("s_barrier")
            if i < 7:
                sR += [(waitlg(rd[20 * i + 19]), G + B), after(waitvm(last[i + 1]), last[i + 1]), bar]
                grp = [[after(after(stl[i // 3 + 1][0], bar), stl[i // 3][1][-1])]] if i in (1, 4) else []
                hd = []
                if i + 3 < 8:
                    hd = dma(i + 3)
                    after(hd[0][1], bar)
                    if i in (0, 3):
                        hd[0] = polls[i + 3][1] + hd[0]
                    if i == 2:
                        hd[0] = [polls[6][0]] + hd[0]
                ww = takew(nw[i + 1])
                while hd or ww:
                    if hd: grp.append(hd.pop(0))
                    if ww: grp.append(ww.pop(0))
                    if len(ww) > len(hd) and ww: grp.append(ww.pop(0))
                if i == 6:
                    grp.insert(0, [dpoll[0][0]])
                sM += pace(grp, G + B + 1, G + B + (60 if i < 6 else 60 - B + 8))
            else:
                sR += [(waitlg(rd[159]), G + B), after(waitvm(w2last), w2last), bar] + w2rd
            h, t = epi(i)
            if i == 0:
                for x in t:
                    after(x, fill[-1])
            if i % 3 == 0:
                after(stl[i // 3][1][0], stl[i // 3][0])
                sE += [(x, G + 44) for x in stl[i // 3][1]]
            if i + 2 < 8:
                after(mf[G + 120], t[-1])
            sE += [(x, G + 50) for x in h] + [(x, G + 62) for x in t]
            stores[i] = lagged(I(f"buffer_store_dwordx4 {EX}, {vGA}, {WS_}, {sGO} offen sc1"), t[-1], 6)
            if i:
                after(t[-1], stores[i - 1])
            sPub += [stores[i], I(f"s_add_u32 {sGO}, {sGO}, {48 * 1024}")]
            if i in (1, 3, 7):
                sFl += [lagged(waitvm(stores[i]), stores[i], c.cflag),
                        I(f"buffer_store_dword {vOne}, {vFO}, {WS_}, {sFO} offen sc1"), I(f"s_add_u32 {sFO}, {sFO}, {FRND}")]
        for i, own in enumerate((sFl[2], sFl[5], stores[5], stores[7])):
            after(dpoll[i][1][0], own)
        tl = []
        for i, g0 in enumerate(c.dat):
            grp = dl[i]
            grp[0] = dpoll[i][1] + grp[0]
            tl += [(g0 + c.dspan * k // 12, g_) for k, g_ in enumerate(grp)]
            if i == 1:
                r0 = rload(0)
                after(r0[0], stores[6])
                tl.append((g0 + c.dspan, r0))
            if i < 3:
                tl.append((max(g0 + 1, c.dat[i + 1] - c.dlead[i]), [dpoll[i + 1][0]]))
                assert g0 + c.dspan <= c.dat[i + 1]
        for g, g_ in sorted(tl, key=lambda e: e[0]):
            sM += [(x, g) for x in g_]
        prevF = None
        sS += [(x, 480) for x in self.stamp(12) + self.stamp(9, 3)]
        sX = []
        for i in range(1, 4):
            G = 480 + 60 * i
            sS += [(x, G) for x in self.stamp(9 + i, 3) + (self.stamp(13) if i == 1 else [])]
            w_ = wr(i - 1)
            bar = I("s_barrier")
            if i == 3:
                rdo = redo(2)
                after(rdo[1], dpoll[3][1][-1], sFl[-1])
                sR += [(x, G + 2) for x in rdo]
            sR += [(x, G + 3) for x in w_] + [(waitlg(w_[-1]), G + 22), after(bar, prevF)]
            after(mf[G + 60], w_[-1]) if i < 3 else None
            f = fin(i - 1, False)
            after(f[0], bar)
            after(f[8], r0[0])
            rp, r0 = r0, rload(i)
            after(r0[0], prevF, rp[1])
            sX += [(x, G + 1) for x in r0] + f
            prevF = f[-2]
        body = weave(mf, [sS, sR, sPub, sFl, sM, sE, sX])
        if c.abl:
            def drop(x):
                t = x.text
                if c.abl & 1 and x.cls == "vm" and f", {sW2p} " in t: return True
                if c.abl & 2 and x.cls == "vm" and f", {sHS} " in t: return True
                if c.abl & 4 and x.cls == "vm" and f", {sGO} " in t: return True
                if c.abl & 8 and x.cls == "valu" and set(x.wr) & {f"v{r}" for r in list(range(32, 56)) + list(range(96, 106))}: return True
                if c.abl & 16 and x.cls == "vm" and f", {sDS} " in t: return True
                if c.abl & 64 and x.cls == "branch": x.text = "s_branch " + t.split()[1].replace("slow", "back")
                if c.abl & 128 and x.cls == "vm" and f", {sDF} " in t: return True
                if c.abl & 256 and x.cls == "vm" and f", {sFO} " in t: return True
                if c.abl & 512 and x.mn == "WAITVM" and any(f", {sGO} " in y.text for y in x.waits): return True
                return False
            body = [x for x in body if not drop(x)]
        p.add(body)
        p.add(self.stamp(14)); p.add(self.stamp(13, 3))
        p.add(redo(3))
        p.add(wr(3))
        p("s_waitcnt lgkmcnt(0)\ns_barrier")
        p.add(fin(3, True))

    def dump_stamps(self):
        p = self.p
        p("s_waitcnt vmcnt(0)")
        p.add(self.stamp(15))
        p("s_waitcnt lgkmcnt(0)")
        for i in range(16):
            p(f"v_mov_b32 v{10 + i}, s{64 + 2 * i}")
        p(f"""s_lshl_b32 {sT[0]}, s2, 2
              s_add_u32 {sT[0]}, {sT[0]}, {sWave}
              s_lshl_b32 {sT[0]}, {sT[0]}, 6
              s_add_u32 {sT[0]}, {sT[0]}, {DIAG}""")
        p.add(self.calc(V(26), sel(L.eq(0), 0, OOB)))
        for i in range(4):
            p(f"buffer_store_dwordx4 v[{10 + 4 * i}:{13 + 4 * i}], v26, {WS_}, {sT[0]} offen offset:{16 * i}")
        if self.c.probe >= 0:
            i, j = self.c.probe >> 4, self.c.probe & 15
            p(f"""s_cmp_lg_u32 s2, {self.c.probewg}
                  s_cbranch_scc1 Lexit
                  s_sub_u32 {sT[0]}, s{64 + 2 * j}, s{64 + 2 * i}
                  s_min_u32 {sT[0]}, {sT[0]}, 10000
                  s_mul_i32 {sT[0]}, {sT[0]}, 20
                  s_add_u32 {sT[0]}, {sT[0]}, s94
                  Lprobe:
                  s_memrealtime s[96:97]
                  s_waitcnt lgkmcnt(0)
                  s_sub_u32 {sT[1]}, s96, {sT[0]}
                  s_cmp_lt_i32 {sT[1]}, 0
                  s_cbranch_scc1 Lprobe""")

    def build(self):
        p = self.p
        self.prologue()
        p(f"""s_cmp_ge_u32 {sMem}, 12
              s_cbranch_scc1 Lhelper
""")
        self.headA()
        p(f"s_cmp_ge_u32 {sMem}, 8\ns_cbranch_scc1 Lq")
        self.gemmA("kv")
        p("s_branch Ljoin\nLq:")
        self.gemmA("q")
        p("s_branch Ljoin\nLhelper:")
        self.helper()
        p("Ljoin:")
        self.phaseB()
        self.phaseCD()
        if self.c.stamps:
            self.dump_stamps()
        body = p.finish()
        head = open(f"cdna_kernels/{NAME}.s.ref").read().split("; Override launch")[0]
        return f"""{head}; @launch grid=(256,1,1) block=(256,1,1) lds=163840
.amdgcn_target "amdgcn-amd-amdhsa--gfx950"
.text
.globl {NAME}_kernel
.p2align 8
.type {NAME}_kernel,@function
{NAME}_kernel:
{body}
Lexit:
    s_endpgm
""" + "\n".join(self.slow) + f"""
Lcodeend:
.section .rodata,"a"
.p2align 6
.amdhsa_kernel {NAME}_kernel
  .amdhsa_next_free_vgpr 512
  .amdhsa_next_free_sgpr 102
  .amdhsa_accum_offset 256
  .amdhsa_group_segment_fixed_size 0
  .amdhsa_kernarg_size 80
  .amdhsa_user_sgpr_count 2
  .amdhsa_user_sgpr_kernarg_segment_ptr 1
  .amdhsa_system_sgpr_workgroup_id_x 1
.end_amdhsa_kernel
"""


def make(**kw):
    c = Cfg()
    for k, v in kw.items():
        assert hasattr(c, k), k
        setattr(c, k, v)
    return Gen(c).build()


if __name__ == "__main__":
    out = sys.argv[1] if len(sys.argv) > 1 else f"cdna_kernels/{NAME}.s"
    kw = {}
    for a in sys.argv[2:]:
        k, v = a.split("=")
        kw[k] = tuple(int(x) for x in v.split(",")) if "," in v else int(v)
    open(out, "w").write(make(**kw))
```

```python
from hb import *
from hb import _hip

def kern(uid, pad=0, lds=0, valu=0, trans=0, ld=0, miss=0, dma=0, mf=1, reps=10):
    b = []; A = b.append
    A("s_load_dwordx2 s[4:5], s[0:1], 0")
    A("s_load_dwordx2 s[6:7], s[0:1], 8")
    A("s_waitcnt lgkmcnt(0)")
    A("s_mov_b32 s8, s4\ns_and_b32 s9, s5, 0xffff\ns_mov_b32 s10, 0x4000000\ns_mov_b32 s11, 0x20000")
    A("s_mov_b32 s12, s6\ns_and_b32 s13, s7, 0xffff\ns_mov_b32 s14, 0x100000\ns_mov_b32 s15, 0x20000")
    A("v_lshlrev_b32 v1, 4, v0\nv_and_b32 v2, 63, v0\nv_lshlrev_b32 v2, 4, v2\nv_lshrrev_b32 v3, 6, v0\ns_nop 0\nv_readfirstlane_b32 s20, v3")
    A("s_mov_b32 s25, 0")
    for i in range(60):
        A(f"buffer_load_dwordx4 a[{4*i}:{4*i+3}], v1, s[8:11], s25 offen\ns_add_u32 s25, s25, 4096")
    A("s_waitcnt vmcnt(0)")
    for i in range(8):
        A(f"buffer_load_dwordx4 v[{60+4*i}:{63+4*i}], v1, s[8:11], s25 offen\ns_add_u32 s25, s25, 4096")
    A("s_waitcnt vmcnt(0)")
    for i in range(5): A(f"ds_write_b128 v1, v[{60+4*i}:{63+4*i}] offset:{4096*i}")
    for r in range(100, 200): A(f"v_mov_b32 v{r}, 1.0")
    A("s_bfe_u32 s22, s2, 0x30003\ns_lshl_b32 s22, s22, 2\ns_add_u32 s22, s22, s20")
    A(f"s_mul_i32 s22, s22, {131072 if miss else 16384}\ns_add_u32 s22, s22, 0x100000\ns_lshl_b32 m0, s20, 10\ns_add_u32 m0, m0, 32768")
    A("s_waitcnt lgkmcnt(0)\ns_sleep 60\ns_barrier")
    A(f"s_mov_b32 s28, {reps}\ns_mov_b32 s25, s22")
    A("s_memtime s[30:31]\ns_memrealtime s[34:35]")
    A(f"Lloop{uid}:")
    if not miss: A("s_mov_b32 s25, s22")
    nl = 0
    for i in range(60):
        bi = ((i // 6) * 2 + i % 2) % 8
        d = 100 + 4 * ((i // 2) % 3)
        if mf: A(f"v_mfma_f32_16x16x32_bf16 v[{d}:{d+3}], a[{4*i}:{4*i+3}], v[{60+4*bi}:{63+4*bi}], v[{d}:{d+3}]")
        else: A("s_nop 1")
        free = 2
        if ld and i % 5 == 2:
            A("s_add_u32 s25, s25, 1024")
            A("buffer_load_dwordx4 v2, s[8:11], s25 offen sc1 lds" if dma else f"buffer_load_dwordx4 v[{200+4*nl}:{203+4*nl}], v2, s[8:11], s25 offen sc1"); nl += 1
            continue
        A("s_waitcnt lgkmcnt(4)")
        if lds and i % 3 == 0:
            bj = (bi + 4) % 8
            A(f"ds_read_b128 v[{60+4*bj}:{63+4*bj}], v2 offset:{1024*((i//3) % 20)}"); free -= 1
        if trans and i % 5 == 1 and free == 2:
            A(f"v_exp_f32 v{170 + i % 16}, v{60 + i % 32}"); free = 0
        for k in range(free):
            if valu and (k == 0 or valu > 1): A(f"v_fma_f32 v{150 + (2*i+k) % 16}, v{60 + (i % 32)}, v190, v{61 + (i % 30)}")
            elif pad or not mf: A("s_nop 0")
        if pad and i % pad == 0: A("s_nop 0")
    A("s_waitcnt vmcnt(24)")
    A("s_sub_u32 s28, s28, 1\ns_cmp_lg_u32 s28, 0")
    A(f"s_cbranch_scc1 Lloop{uid}")
    A("s_memtime s[32:33]\ns_memrealtime s[36:37]")
    A("s_waitcnt vmcnt(0) lgkmcnt(0)")
    A("s_sub_u32 s30, s32, s30\ns_sub_u32 s34, s36, s34")
    A("v_mov_b32 v6, s30\nv_mov_b32 v7, s34\ns_lshl_b32 s26, s2, 3\nv_mov_b32 v8, s26")
    A("s_cmp_lg_u32 s20, 0\ns_cbranch_scc1 Lend%d\ns_mov_b64 exec, 1" % uid)
    A("buffer_store_dwordx2 v[6:7], v8, s[12:15], 0 offen\ns_waitcnt vmcnt(0)")
    A(f"Lend{uid}:")
    return "\n".join(b)

T = {"mfma": {}, "mfma pad 89%": dict(pad=2), "mfma pad 80%": dict(pad=1), "+lds": dict(lds=1), "+valu1": dict(valu=1), "+valu2": dict(valu=2),
     "+trans": dict(trans=1), "+ld hit": dict(ld=1), "+ld miss": dict(ld=1, miss=1), "+dma hit": dict(ld=1, dma=1),
     "+lds+valu+trans": dict(lds=1, valu=1, trans=1), "all hit": dict(lds=1, valu=1, trans=1, ld=1), "all miss": dict(lds=1, valu=1, trans=1, ld=1, miss=1),
     "all miss pad80": dict(lds=1, valu=1, trans=1, ld=1, miss=1, pad=1), "no mfma, all miss": dict(lds=1, valu=1, trans=1, ld=1, miss=1, mf=0),
     "no mfma, ld miss": dict(ld=1, miss=1, mf=0)}
ks = [(f"k{i}", kern(i, **t), 512, 256) for i, t in enumerate(T.values())]
co = build(ks, "b23")
if os.path.exists("/dev/kfd"):
    m = Mod(co, "k0")
    rng = np.random.default_rng(0)
    src = DeviceBuffer.from_numpy((rng.standard_normal(4 << 20).astype(np.float32).view(np.uint32) >> 16).astype(np.uint16))
    out = DeviceBuffer(1 << 20); big = DeviceBuffer(64 << 20)
    names = list(T); res = {n: [] for n in names}
    for rep in range(15):
        for j in rng.permutation(len(ks)):
            hip_check(_hip.hipMemsetAsync(ctypes.c_void_p(big.ptr), rep, 64 << 20, None))
            m.launch(ks[j][0], 256, 256, [src.ptr, out.ptr] + [0] * 8, lds=65536); sync()
            r = out.to_numpy(np.uint32, (256, 2)); res[names[j]].append((np.median(r[:, 0]), np.median(r[:, 1]), r[:, 1].max()))
    for n in names:
        md = np.median(np.array(res[n]), axis=0)
        print(f"{n:22s} cyc/tile={md[0]/10:6.0f} us/tile={md[1]/1000:5.3f} slowest={md[2]/1000:5.3f} GHz={md[0]/md[1]/10:5.2f}")
```
